```python
import torch

def _softmax(x, axis=-1):
    return torch.softmax(x, dim=axis)
def _gelu(x):
    return torch.nn.functional.gelu(x, approximate="tanh")
def _silu(x):
    return torch.nn.functional.silu(x)
def _sigmoid(x):
    return torch.sigmoid(x)
def _layernorm(x, axis=-1, eps=1e-5):
    m = x.mean(dim=axis, keepdim=True)
    v = x.var(dim=axis, keepdim=True, unbiased=False)
    return (x - m) / torch.sqrt(v + eps)
def _scatter_add(tgt, idx, src, axis=0):
    return tgt.clone().index_add_(axis, idx, src)
def _segment_sum(src, seg, n):
    out = torch.zeros((n,) + src.shape[1:], dtype=src.dtype)
    return out.index_add_(0, seg, src)
def _pad(x, pw):
    flat = tuple(v for pair in reversed(pw) for v in pair)
    return torch.nn.functional.pad(x, flat)

kernel_name = 'parallel_sum__ssm_conv_s4__glu_gated_geglu__prompt'

def setup_inputs():

    _w = (lambda a: (lambda t: t.to(torch.bfloat16) if t.is_floating_point() else t)(torch.as_tensor(a)))
    def _A_setup():
        B, L, D, N = 1, 2048, 512, 128
        A_re = -(lambda _x: torch.exp(torch.as_tensor(_x)))((lambda *s: torch.randn(*s, dtype=torch.bfloat16) * 6.4)(D, N))
        A_im = torch.pi * (lambda *s: torch.randn(*s, dtype=torch.bfloat16) * 0.05)(D, N)
        B_re = (lambda *s: torch.randn(*s, dtype=torch.bfloat16) * 0.1)(D, N)
        B_im = (lambda *s: torch.randn(*s, dtype=torch.bfloat16) * 0.1)(D, N)
        C_re = (lambda *s: torch.randn(*s, dtype=torch.bfloat16) * 0.1)(D, N)
        C_im = (lambda *s: torch.randn(*s, dtype=torch.bfloat16) * 0.1)(D, N)
        log_dt = (lambda *s: torch.randn(*s, dtype=torch.bfloat16) * 0.05)(D) * 0.5 - 4.0
        Dskip = (lambda *s: torch.randn(*s, dtype=torch.bfloat16) * 0.05)(D)
        return {
            "u": _w((lambda *s: torch.randn(*s, dtype=torch.bfloat16) * 0.05)(B, L, D)),
            "A_re": _w(A_re),
            "A_im": _w(A_im),
            "B_re": _w(B_re),
            "B_im": _w(B_im),
            "C_re": _w(C_re),
            "C_im": _w(C_im),
            "log_dt": _w(log_dt),
            "Dskip": _w(Dskip),
        }
    _A_in = _A_setup()

    def _B_setup():
        B, S, Dm, Df = 1, 2048, 512, 1792
        return {
            "x": _w((lambda *s: torch.randn(*s, dtype=torch.bfloat16) * 0.05)(B, S, Dm)),
            "w_gate": _w((lambda *s: torch.randn(*s, dtype=torch.bfloat16) * 0.4)(Dm, Df) * (Dm ** -0.5)),
            "w_up": _w((lambda *s: torch.randn(*s, dtype=torch.bfloat16) * 0.4)(Dm, Df) * (Dm ** -0.5)),
            "w_down": _w((lambda *s: torch.randn(*s, dtype=torch.bfloat16) * 0.4)(Df, Dm) * (Df ** -0.5)),
        }
    _B_in = _B_setup()

    return {
        "A_u": _A_in["u"],
        "A_A_re": _A_in["A_re"],
        "A_A_im": _A_in["A_im"],
        "A_B_re": _A_in["B_re"],
        "A_B_im": _A_in["B_im"],
        "A_C_re": _A_in["C_re"],
        "A_C_im": _A_in["C_im"],
        "A_log_dt": _A_in["log_dt"],
        "A_Dskip": _A_in["Dskip"],
        "B_x": _B_in["x"],
        "B_w_gate": _B_in["w_gate"],
        "B_w_up": _B_in["w_up"],
        "B_w_down": _B_in["w_down"],
    }

def reference(A_u, A_A_re, A_A_im, A_B_re, A_B_im, A_C_re, A_C_im, A_log_dt, A_Dskip, B_x, B_w_gate, B_w_up, B_w_down):
    def _A_ref(u, A_re, A_im, B_re, B_im, C_re, C_im, log_dt, Dskip):
        Bsz, L, D = u.shape
        dt = torch.exp(log_dt)[:, None]
        A = A_re + 1j * A_im
        Bc = B_re + 1j * B_im
        Cc = C_re + 1j * C_im
        logdA = dt * A
        dB = dt * Bc
        l = (lambda x, dt: x.to(dt))(torch.arange(L), A_re.dtype)
        P = torch.exp(logdA[:, :, None] * l[None, None, :])
        K = torch.einsum("dn,dnl,dn->dl", Cc, P, dB).real
        L2 = 2 * L
        Kp = _pad(K, ((0, 0), (0, L)))
        up = (lambda x, *d: x.permute(*d))(u, 0, 2, 1)
        up = _pad(up, ((0, 0), (0, 0), (0, L)))
        Kf = (lambda x, axes=(-2,-1): torch.fft.rfft2(x.float(), dim=axes))(Kp[:, None, :], axes=(-2, -1))
        Uf = (lambda x, axes=(-2,-1): torch.fft.rfft2(x.float(), dim=axes))(up[:, :, None, :], axes=(-2, -1))
        Yf = Uf * Kf[None, :, :, :]
        y = (lambda x, s, axes=(-2,-1): torch.fft.irfft2(x, s=s, dim=axes).to(torch.bfloat16))(Yf, (1, L2), axes=(-2, -1))[:, :, 0, :L]
        y = (lambda x, *d: x.permute(*d))(y, 0, 2, 1) + u * Dskip[None, None, :]
        return y

    def _B_ref(x, w_gate, w_up, w_down):
        g = torch.einsum("bsd,df->bsf", x, w_gate)
        u = torch.einsum("bsd,df->bsf", x, w_up)
        h = _gelu(g) * u
        return torch.einsum("bsf,fd->bsd", h, w_down)

    x = A_u
    xn = _layernorm(x, axis=-1)
    return x + _A_ref(xn, A_A_re, A_A_im, A_B_re, A_B_im, A_C_re, A_C_im, A_log_dt, A_Dskip) + _B_ref(xn, B_w_gate, B_w_up, B_w_down)
```

```python
import sys, math

KNAME = "parallel_sum__ssm_conv_s4__glu_gated_geglu__prompt_kernel"

WS_EPOCH = 0
WS_F1 = 0x1000
WS_F2 = 0x2000
WS_F3 = 0x3000
WS_XF = 0x100000
WS_XT = 0x300000
WS_HF = 0x500000
WS_YT = 0xD00000
WS_DBG = 0x1000000
WS_SIZE = 0x4000000

L_TC = 0
TC_CH = 33280
TC_CP = 4160
L_PT = 0
PT_CH = 31008
PT_ROW = 544
L_LNX = 0
LNX_ROW = 1088
L_KT = 66560
KT_CH = 1392
L_RING = 69632
SLOT = 28928
U_OFF = 14464
L_XC = L_RING + 2 * SLOT
XC_CH = 4608
L_RED = L_RING
LDS_BYTES = 163840

class Cnt:
    def __init__(self, name, mx):
        self.name, self.mx = name, mx
        self.ops = []; self.done = 0
    def issue(self, tag=None):
        self.ops.append(tag)
    def need(self, tag):
        idx = max(i for i, t in enumerate(self.ops) if t == tag)
        if idx < self.done: return None
        n = len(self.ops) - 1 - idx
        n = min(n, self.mx)
        self.done = len(self.ops) - n
        return n
    def drain(self):
        self.done = len(self.ops)

class Asm:
    def __init__(self):
        self.L = []
        self.vm = Cnt("vmcnt", 63)
        self.lg = Cnt("lgkmcnt", 15)
    def __call__(self, s):
        for line in s.split("\n"):
            line = line.strip()
            if line: self.L.append("    " + line)
    def label(self, l): self.L.append(l + ":")
    def cm(self, s): self.L.append("    ; " + s)
    def vmem(self, s, tag=None): self(s); self.vm.issue(tag)
    def lds(self, s, tag=None): self(s); self.lg.issue(tag)
    def wait_vm(self, tag):
        n = self.vm.need(tag)
        if n is not None: self(f"s_waitcnt vmcnt({n})")
    def wait_lg(self, tag):
        n = self.lg.need(tag)
        if n is not None: self(f"s_waitcnt lgkmcnt({n})")
    def wait_both(self, vtag, ltag):
        pass
    def drain_vm(self): self("s_waitcnt vmcnt(0)"); self.vm.drain()
    def drain_lg(self): self("s_waitcnt lgkmcnt(0)"); self.lg.drain()
    def text(self): return "\n".join(self.L) + "\n"

def vr(a, n=1): return f"v{a}" if n == 1 else f"v[{a}:{a+n-1}]"
def ar(a, n=1): return f"a{a}" if n == 1 else f"a[{a}:{a+n-1}]"
def sr(a, n=1): return f"s{a}" if n == 1 else f"s[{a}:{a+n-1}]"
def f2u(x):
    import struct
    return struct.unpack("<I", struct.pack("<f", x))[0]
def fhex(x): return hex(f2u(x))

S_X, S_WS, S_W, S_D, S_O = 36, 40, 44, 52, 56
sWV, sXC, sJ, sCP, sRB, sCS, sRT, sCT, sNONCE = 60, 61, 62, 63, 64, 65, 66, 67, 68
sT0, sT1, sT2, sT3, sT4, sT5 = 70, 71, 72, 73, 74, 75
sLDT, sDSK = 76, 77
sMASK = 78
sRINGW = 79
sWOFF = 80
sHV, sCH = 81, 82
sC1, sC2 = 84, 86
sEX = 88
sP0, sP1, sP2, sP3 = 90, 91, 92, 93
sSPIN = 94
vTID, vLANE = 0, 1
vL16 = 2
vDMA = 22

def srd(a, dst, src, size):
    a(f"s_mov_b32 s{dst}, s{src}")
    a(f"s_and_b32 s{dst+1}, s{src+1}, 0xffff")
    a(f"s_mov_b32 s{dst+2}, {size}")
    a(f"s_mov_b32 s{dst+3}, 0x20000")

def dma_w_chunk(a, chunk):
    slot = chunk % 3
    a(f"s_add_u32 s{sT0}, s{sWOFF}, {chunk * 64 * 3584}")
    for i in range(7):
        a(f"s_add_u32 m0, s{sRINGW}, {slot * SLOT + i * 1024}")
        a("s_nop 0")
        a.vmem(f"buffer_load_dwordx4 v{vDMA+i}, s[{S_W}:{S_W+3}], s{sT0} offen lds", f"w{chunk}")

def flag_store(a, off_sreg_expr_setup, name):
    a(f"s_cmp_lg_u32 s{sWV}, 0")
    a(f"s_cbranch_scc1 L_nofs_{name}")
    a(off_sreg_expr_setup)
    a(f"v_mov_b32 v4, s{sT1}")
    a(f"v_mov_b32 v5, s{sNONCE}")
    a(f"s_mov_b64 exec, 1")
    a(f"buffer_store_dword v5, v4, s[{S_WS}:{S_WS+3}], 0 offen sc0 sc1")
    a(f"s_mov_b64 exec, -1")
    a.label(f"L_nofs_{name}")

def flag_wait(a, name, setup, nload):
    a(f"s_cmp_lg_u32 s{sWV}, 0")
    a(f"s_cbranch_scc1 L_polled_{name}")
    a(setup)
    a(f"s_mov_b32 s{sSPIN}, 0")
    a.label(f"L_poll_{name}")
    if nload == 1:
        a(f"buffer_load_dword v8, v4, s[{S_WS}:{S_WS+3}], 0 offen sc0 sc1")
        a("s_waitcnt vmcnt(0)")
        a(f"v_cmp_ne_u32 vcc, s{sNONCE}, v8")
    else:
        a(f"buffer_load_dwordx4 v[8:11], v4, s[{S_WS}:{S_WS+3}], 0 offen sc0 sc1")
        a("s_waitcnt vmcnt(0)")
        a(f"v_xor_b32 v8, s{sNONCE}, v8")
        a(f"v_xor_b32 v9, s{sNONCE}, v9")
        a(f"v_xor_b32 v10, s{sNONCE}, v10")
        a(f"v_xor_b32 v11, s{sNONCE}, v11")
        a("v_or_b32 v8, v8, v9")
        a("v_or3_b32 v8, v8, v10, v11")
        a("v_cmp_ne_u32 vcc, 0, v8")
    a("s_nop 4")
    a("s_cmp_eq_u64 vcc, 0")
    a(f"s_cbranch_scc1 L_polled_{name}")
    a("s_sleep 1")
    a(f"s_add_u32 s{sSPIN}, s{sSPIN}, 1")
    a(f"s_cmp_lt_u32 s{sSPIN}, 100000")
    a(f"s_cbranch_scc1 L_poll_{name}")
    a.label(f"L_polled_{name}")
    a("s_barrier")

def dpp_reduce(a, regs, tmps):
    for ctrl in ("quad_perm:[1,0,3,2]", "quad_perm:[2,3,0,1]", "row_half_mirror", "row_mirror"):
        a("s_nop 1")
        for r in regs:
            a(f"v_add_f32_dpp v{r}, v{r}, v{r} {ctrl} row_mask:0xf bank_mask:0xf")
    for sw in ("v_permlane16_swap_b32", "v_permlane32_swap_b32"):
        for r, t in zip(regs, tmps):
            a(f"v_mov_b32 v{t}, v{r}")
        a("s_nop 1")
        for r, t in zip(regs, tmps):
            a(f"{sw} v{r}, v{t}")
        a("s_nop 1")
        for r, t in zip(regs, tmps):
            a(f"v_add_f32 v{r}, v{r}, v{t}")

def cmul(a, d, x, y, t):
    a(f"v_pk_mul_f32 v[{t}:{t+1}], v[{x}:{x+1}], v[{y}:{y+1}] op_sel:[0,0] op_sel_hi:[1,0]")
    a(f"v_pk_fma_f32 v[{d}:{d+1}], v[{x}:{x+1}], v[{y}:{y+1}], v[{t}:{t+1}] op_sel:[1,1,0] op_sel_hi:[0,1,1] neg_lo:[1,0,0]")

def dump_lds(a, nbytes, lds_base, ws_off, name):
    a("s_waitcnt vmcnt(0) lgkmcnt(0)")
    a("s_barrier")
    a(f"s_mul_i32 s{sT0}, s2, {nbytes}")
    a(f"s_add_u32 s{sT0}, s{sT0}, {WS_DBG + ws_off}")
    a(f"v_lshlrev_b32 v4, 4, v0")
    n = (nbytes + 4095) // 4096
    for i in range(n):
        a(f"v_add_u32 v5, {i*4096}, v4")
        a(f"v_cmp_gt_u32 vcc, {nbytes}, v5")
        a(f"s_and_saveexec_b64 s[{sEX}:{sEX+1}], vcc")
        a(f"s_cbranch_execz L_dump_{name}_{i}")
        a(f"v_add_u32 v6, {lds_base}, v5")
        a(f"ds_read_b128 v[8:11], v6")
        a("s_waitcnt lgkmcnt(0)")
        a(f"buffer_store_dwordx4 v[8:11], v5, s[{S_WS}:{S_WS+3}], s{sT0} offen")
        a("s_waitcnt vmcnt(0)")
        a.label(f"L_dump_{name}_{i}")
        a(f"s_mov_b64 exec, -1")

def prologue(a):
    a("s_cmp_ge_u32 s2, 256")
    a("s_cbranch_scc1 L_end")
    a("s_load_dwordx16 s[4:19], s[0:1], 0")
    a("s_load_dwordx4 s[20:23], s[0:1], 64")
    a("s_load_dwordx8 s[24:31], s[0:1], 80")
    a("s_load_dwordx2 s[32:33], s[0:1], 120")
    a(f"v_lshrrev_b32 v2, 6, v0")
    a(f"v_and_b32 v{vLANE}, 63, v0")
    a(f"v_readfirstlane_b32 s{sWV}, v2")
    a(f"s_and_b32 s{sXC}, s2, 7")
    a(f"s_lshr_b32 s{sJ}, s2, 3")
    a(f"s_lshl_b32 s{sT0}, s{sXC}, 5")
    a(f"s_add_u32 s{sCP}, s{sT0}, s{sJ}")
    a(f"s_lshr_b32 s{sT0}, s{sXC}, 1")
    a(f"s_lshl_b32 s{sT0}, s{sT0}, 2")
    a(f"s_lshr_b32 s{sT1}, s{sJ}, 3")
    a(f"s_add_u32 s{sRB}, s{sT0}, s{sT1}")
    a(f"s_and_b32 s{sT0}, s{sXC}, 1")
    a(f"s_lshl_b32 s{sT0}, s{sT0}, 3")
    a(f"s_and_b32 s{sCT}, s{sJ}, 7")
    a(f"s_add_u32 s{sCS}, s{sT0}, s{sCT}")
    a(f"s_lshl_b32 s{sT0}, s{sXC}, 2")
    a(f"s_add_u32 s{sRT}, s{sT0}, s{sT1}")
    a(f"s_and_b32 s{sHV}, s{sWV}, 1")
    a(f"s_lshr_b32 s{sCH}, s{sWV}, 1")
    a(f"s_mov_b32 s{sMASK}, 0xffff0000")
    a(f"v_lshlrev_b32 v{vL16}, 4, v{vLANE}")
    a("s_waitcnt lgkmcnt(0)")
    srd(a, S_X, 4, 2097152)
    srd(a, S_WS, 32, WS_SIZE)
    a(f"s_cmp_ge_u32 s{sWV}, 2")
    a(f"s_cselect_b32 s{S_W}, s26, s24")
    a(f"s_cselect_b32 s{S_W+1}, s27, s25")
    a(f"s_and_b32 s{S_W+1}, s{S_W+1}, 0xffff")
    a(f"s_mov_b32 s{S_W+2}, 1835008")
    a(f"s_mov_b32 s{S_W+3}, 0x20000")
    srd(a, S_D, 28, 1835008)
    srd(a, S_O, 30, 2097152)
    a("v_mov_b32 v3, 0")
    a.vmem(f"buffer_load_dword v4, v3, s[{S_WS}:{S_WS+3}], 0 offen sc0 sc1", "epoch")
    a(f"s_lshl_b32 s{sT0}, s2, 3")
    a(f"s_lshl_b32 s{sT1}, s{sWV}, 1")
    a(f"s_add_u32 s{sT0}, s{sT0}, s{sT1}")
    a(f"s_lshl_b32 s{sT0}, s{sT0}, 10")
    a.vmem(f"buffer_load_dwordx4 v[8:11], v{vL16}, s[{S_X}:{S_X+3}], s{sT0} offen", "x")
    a.vmem(f"buffer_load_dwordx4 v[12:15], v{vL16}, s[{S_X}:{S_X+3}], s{sT0} offen offset:1024", "x")
    a(f"s_lshl_b32 s{sT0}, s{sCP}, 1")
    a(f"s_add_u32 s{sT0}, s{sT0}, s{sCH}")
    a(f"s_lshl_b32 s{sT0}, s{sT0}, 8")
    a(f"s_lshl_b32 s{sT1}, s{sHV}, 7")
    a(f"s_add_u32 s{sT0}, s{sT0}, s{sT1}")
    a(f"v_lshl_add_u32 v6, v{vLANE}, 1, s{sT0}")
    for i in range(6):
        a.vmem(f"global_load_ushort v{16+i}, v6, s[{6+2*i}:{7+2*i}]", "par")
    a(f"s_lshl_b32 s{sT0}, s{sCP}, 2")
    a(f"s_load_dword s{sLDT}, s[18:19], s{sT0}")
    a(f"s_load_dword s{sDSK}, s[20:21], s{sT0}")
    a(f"s_movk_i32 s{sT2}, 4682")
    a(f"s_movk_i32 s{sT3}, 3360")
    for i in range(7):
        a(f"v_add_u32 v7, {64*i}, v{vLANE}")
        a(f"v_mul_u32_u24 v29, s{sT2}, v7")
        a(f"v_lshrrev_b32 v29, 16, v29")
        a(f"v_lshlrev_b32 v7, 4, v7")
        a(f"v_mad_u32_u24 v{vDMA+i}, v29, s{sT3}, v7")
    a(f"s_mul_i32 s{sRINGW}, s{sCH}, {U_OFF}")
    a(f"s_mul_i32 s{sT0}, s{sHV}, 7168")
    a(f"s_add_u32 s{sRINGW}, s{sRINGW}, s{sT0}")
    a(f"s_add_u32 s{sRINGW}, s{sRINGW}, {L_RING}")
    a(f"s_mul_i32 s{sWOFF}, s{sHV}, {32*3584}")
    a(f"s_mul_i32 s{sT0}, s{sCS}, 224")
    a(f"s_add_u32 s{sWOFF}, s{sWOFF}, s{sT0}")
    dma_w_chunk(a, 0)

def layernorm(a):
    a.cm("==== layernorm of rows 8w+2v, +1 ====")
    a.wait_vm("x")
    a(f"v_readfirstlane_b32 s{sNONCE}, v4")
    X = [32, 40]
    for rI, src in enumerate((8, 12)):
        for k in range(4):
            a(f"v_lshlrev_b32 v{X[rI]+2*k}, 16, v{src+k}")
            a(f"v_and_b32 v{X[rI]+2*k+1}, s{sMASK}, v{src+k}")
    a(f"s_mul_i32 s{sNONCE}, s{sNONCE}, 1664525")
    a(f"s_add_u32 s{sNONCE}, s{sNONCE}, 1013904223")
    T = [48, 52]
    S = [56, 58]
    for rI in range(2):
        x, t = X[rI], T[rI]
        a(f"v_pk_add_f32 v[{t}:{t+1}], v[{x}:{x+1}], v[{x+2}:{x+3}]")
        a(f"v_pk_add_f32 v[{t+2}:{t+3}], v[{x+4}:{x+5}], v[{x+6}:{x+7}]")
    for rI in range(2):
        t = T[rI]
        a(f"v_pk_add_f32 v[{t}:{t+1}], v[{t}:{t+1}], v[{t+2}:{t+3}]")
    for rI in range(2):
        t = T[rI]
        a(f"v_add_f32 v{S[rI]}, v{t}, v{t+1}")
    dpp_reduce(a, S, [60, 61])
    for rI in range(2):
        a(f"v_mul_f32 v{S[rI]}, {fhex(1/512)}, v{S[rI]}")
    Dv = [64, 72]
    V = [57, 59]
    for rI in range(2):
        x, d, m = X[rI], Dv[rI], S[rI]
        for k in range(4):
            a(f"v_pk_add_f32 v[{d+2*k}:{d+2*k+1}], v[{x+2*k}:{x+2*k+1}], v[{m}:{m+1}] op_sel_hi:[1,0] neg_lo:[0,1] neg_hi:[0,1]")
    for rI in range(2):
        d, t = Dv[rI], T[rI]
        a(f"v_pk_mul_f32 v[{t}:{t+1}], v[{d}:{d+1}], v[{d}:{d+1}]")
        for k in range(1, 4):
            a(f"v_pk_fma_f32 v[{t}:{t+1}], v[{d+2*k}:{d+2*k+1}], v[{d+2*k}:{d+2*k+1}], v[{t}:{t+1}]")
    for rI in range(2):
        a(f"v_add_f32 v{V[rI]}, v{T[rI]}, v{T[rI]+1}")
    dpp_reduce(a, V, [60, 61])
    for rI in range(2):
        a(f"v_mul_f32 v{V[rI]}, {fhex(1/512)}, v{V[rI]}")
    for rI in range(2):
        a(f"v_cvt_pk_bf16_f32 v{T[rI]}, v{S[rI]}, v{V[rI]}")
    for rI in range(2):
        a(f"v_lshlrev_b32 v{S[rI]}, 16, v{T[rI]}")
        a(f"v_and_b32 v{V[rI]}, s{sMASK}, v{T[rI]}")
    for rI in range(2):
        a(f"v_add_f32 v{V[rI]}, {fhex(1e-5)}, v{V[rI]}")
    for rI in range(2):
        a(f"v_cvt_pk_bf16_f32 v{V[rI]}, v{V[rI]}, v{V[rI]}")
    for rI in range(2):
        a(f"v_lshlrev_b32 v{V[rI]}, 16, v{V[rI]}")
    for rI in range(2):
        a(f"v_sqrt_f32 v{V[rI]}, v{V[rI]}")
    a("s_nop 0")
    for rI in range(2):
        a(f"v_cvt_pk_bf16_f32 v{V[rI]}, v{V[rI]}, v{V[rI]}")
    for rI in range(2):
        a(f"v_lshlrev_b32 v{V[rI]}, 16, v{V[rI]}")
    for rI in range(2):
        a(f"v_rcp_f32 v{T[rI]}, v{V[rI]}")
    for rI in range(2):
        x, d, m = X[rI], Dv[rI], S[rI]
        for k in range(4):
            a(f"v_pk_add_f32 v[{d+2*k}:{d+2*k+1}], v[{x+2*k}:{x+2*k+1}], v[{m}:{m+1}] op_sel_hi:[1,0] neg_lo:[0,1] neg_hi:[0,1]")
    for rI in range(2):
        x, d = X[rI], Dv[rI]
        for k in range(4):
            a(f"v_cvt_pk_bf16_f32 v{x+k}, v{d+2*k}, v{d+2*k+1}")
    for rI in range(2):
        x, d = X[rI], Dv[rI]
        for k in range(4):
            a(f"v_lshlrev_b32 v{d+2*k}, 16, v{x+k}")
            a(f"v_and_b32 v{d+2*k+1}, s{sMASK}, v{x+k}")
    for rI in range(2):
        d, t = Dv[rI], T[rI]
        for k in range(4):
            a(f"v_pk_mul_f32 v[{d+2*k}:{d+2*k+1}], v[{d+2*k}:{d+2*k+1}], v[{t}:{t+1}] op_sel_hi:[1,0]")
    for rI in range(2):
        x, d = X[rI], Dv[rI]
        for k in range(4):
            a(f"v_cvt_pk_bf16_f32 v{x+k}, v{d+2*k}, v{d+2*k+1}")
    a(f"s_mul_i32 s{sT0}, s{sWV}, {2*LNX_ROW}")
    a(f"v_add_u32 v7, s{sT0}, v{vL16}")
    a.lds(f"ds_write_b128 v7, v[32:35] offset:{L_LNX}")
    a.lds(f"ds_write_b128 v7, v[40:43] offset:{L_LNX + LNX_ROW}")
    a("v_and_b32 v48, 7, v0")
    a("v_lshrrev_b32 v49, 3, v0")
    a(f"v_mul_u32_u24 v50, {LNX_ROW}, v48")
    a("v_lshl_add_u32 v50, v49, 4, v50")
    a("v_lshrrev_b32 v51, 1, v49")
    a("v_lshlrev_b32 v51, 10, v51")
    a("v_and_b32 v52, 1, v49")
    a("v_lshl_add_u32 v51, v52, 9, v51")
    a("v_lshl_add_u32 v51, v48, 4, v51")
    a(f"s_lshr_b32 s{sT0}, s2, 2")
    a(f"s_lshl_b32 s{sT0}, s{sT0}, 15")
    a(f"s_and_b32 s{sT1}, s2, 3")
    a(f"s_lshl_b32 s{sT1}, s{sT1}, 7")
    a(f"s_add_u32 s{sT0}, s{sT0}, s{sT1}")
    a(f"s_add_u32 s{sT0}, s{sT0}, {WS_XF}")
    a(f"s_add_u32 s{sT1}, s{sT0}, 16384")
    a(f"v_bfe_u32 v53, v{vLANE}, 2, 2")
    a(f"v_mul_u32_u24 v53, {LNX_ROW}, v53")
    a(f"v_lshrrev_b32 v54, 4, v{vLANE}")
    a(f"v_lshl_add_u32 v53, v54, 5, v53")
    a(f"v_and_b32 v54, 3, v{vLANE}")
    a(f"v_lshl_add_u32 v53, v54, 3, v53")
    a(f"s_lshl_b32 s{sT2}, s{sWV}, 8")
    a(f"v_add_u32 v53, s{sT2}, v53")
    a(f"s_lshl_b32 s{sT2}, s2, 13")
    a(f"s_lshl_b32 s{sT3}, s{sWV}, 11")
    a(f"s_add_u32 s{sT2}, s{sT2}, s{sT3}")
    a(f"s_add_u32 s{sT2}, s{sT2}, {WS_XT}")
    a.drain_lg()
    a("s_barrier")
    a.lds(f"ds_read_b128 v[32:35], v50 offset:{L_LNX}", "xf0")
    a.lds(f"ds_read_b128 v[36:39], v50 offset:{L_LNX + 512}", "xf1")
    a.lds(f"ds_read_b64_tr_b16 v[40:41], v53 offset:{L_LNX}", "xt0")
    a.lds(f"ds_read_b64_tr_b16 v[42:43], v53 offset:{L_LNX + 4*LNX_ROW}", "xt0")
    a.lds(f"ds_read_b64_tr_b16 v[44:45], v53 offset:{L_LNX + 128}", "xt1")
    a.lds(f"ds_read_b64_tr_b16 v[46:47], v53 offset:{L_LNX + 4*LNX_ROW + 128}", "xt1")
    a.wait_lg("xf0")
    a.vmem(f"buffer_store_dwordx4 v[32:35], v51, s[{S_WS}:{S_WS+3}], s{sT0} offen sc0 sc1", "lnst")
    a.wait_lg("xf1")
    a.vmem(f"buffer_store_dwordx4 v[36:39], v51, s[{S_WS}:{S_WS+3}], s{sT1} offen sc0 sc1", "lnst")
    a.wait_lg("xt0")
    a.vmem(f"buffer_store_dwordx4 v[40:43], v{vL16}, s[{S_WS}:{S_WS+3}], s{sT2} offen sc0 sc1", "lnst")
    a.wait_lg("xt1")
    a.vmem(f"buffer_store_dwordx4 v[44:47], v{vL16}, s[{S_WS}:{S_WS+3}], s{sT2} offen offset:1024 sc0 sc1", "lnst")
    dma_w_chunk(a, 1)
    dma_w_chunk(a, 2)
    a.wait_vm("lnst")
    a("s_barrier")
    flag_store(a, f"s_lshr_b32 s{sT1}, s2, 4\ns_lshl_b32 s{sT1}, s{sT1}, 8\ns_and_b32 s{sT2}, s2, 15\ns_lshl_b32 s{sT2}, s{sT2}, 2\n"
                  f"s_add_u32 s{sT1}, s{sT1}, s{sT2}\ns_add_u32 s{sT1}, s{sT1}, {WS_F1}", "f1")

def direct_exp(a, d, l, A2, F, t):
    a(f"v_mul_f32 v{t}, {fhex(float(l))}, v{A2}")
    a(f"v_mul_f32 v{t+1}, {fhex(float(l))}, v{F}")
    a(f"v_exp_f32 v{t}, v{t}")
    a(f"v_fract_f32 v{t+1}, v{t+1}")
    a(f"v_cos_f32 v{t+2}, v{t+1}")
    a(f"v_sin_f32 v{t+3}, v{t+1}")
    a("s_nop 0")
    a(f"v_mul_f32 v{d}, v{t}, v{t+2}")
    a(f"v_mul_f32 v{d+1}, v{t}, v{t+3}")

def kgen(a):
    a.cm("==== S4 kernel generation ====")
    a.wait_vm("par")
    for i in range(6):
        a(f"v_lshlrev_b32 v{16+i}, 16, v{16+i}")
    a("s_waitcnt lgkmcnt(0)")
    a(f"s_lshl_b32 s{sT0}, s{sLDT}, 16")
    a(f"s_and_b32 s{sT1}, s{sLDT}, s{sMASK}")
    a(f"s_cmp_eq_u32 s{sCH}, 0")
    a(f"s_cselect_b32 s{sT0}, s{sT0}, s{sT1}")
    a(f"v_mov_b32 v30, s{sT0}")
    a(f"v_mul_f32 v30, {fhex(math.log2(math.e))}, v30")
    a("v_exp_f32 v30, v30")
    a("s_nop 0")
    a("v_cvt_pk_bf16_f32 v30, v30, v30")
    a("v_lshlrev_b32 v30, 16, v30")
    A2, F = 32, 33
    a(f"v_mul_f32 v{A2}, v30, v16")
    a(f"v_mul_f32 v{F}, v30, v17")
    a(f"v_mul_f32 v{A2}, {fhex(math.log2(math.e))}, v{A2}")
    a(f"v_mul_f32 v{F}, {fhex(1/(2*math.pi))}, v{F}")
    a("v_mul_f32 v34, v30, v18")
    a("v_mul_f32 v35, v30, v19")
    E1, E8, E128, W = 36, 38, 40, 42
    cmul(a, W, 20, 34, 44)
    direct_exp(a, E1, 1, A2, F, 44)
    direct_exp(a, E8, 8, A2, F, 48)
    direct_exp(a, E128, 128, A2, F, 44)
    E2, E4, E256, E512, E1024, Q1 = 52, 54, 56, 58, 60, 62
    cmul(a, E2, E1, E1, 44)
    cmul(a, E256, E128, E128, 46)
    a(f"v_mov_b32 v{Q1}, v{E8}")
    a(f"v_xor_b32 v{Q1+1}, 0x80000000, v{E8+1}")
    cmul(a, E4, E2, E2, 44)
    cmul(a, E512, E256, E256, 46)
    cmul(a, E1024, E512, E512, 44)
    a(f"s_mul_i32 s{sT0}, s{sCH}, {PT_CH}")
    a(f"s_lshl_b32 s{sT1}, s{sHV}, 8")
    a(f"s_add_u32 s{sT0}, s{sT0}, s{sT1}")
    vAD = 64
    a(f"v_lshl_add_u32 v{vAD}, v{vLANE}, 2, s{sT0}")
    cv = [66, 67, 68, 69]; cvi = [0]
    def emit(row, pair):
        c = cv[cvi[0] % 4]; cvi[0] += 1
        a(f"v_cvt_pk_bf16_f32 v{c}, v{pair}, v{pair+1}")
        a.lds(f"ds_write_b32 v{vAD}, v{c} offset:{L_PT + row*PT_ROW}")
    a("v_mov_b32 v65, 0x3f80")
    a.lds(f"ds_write_b32 v{vAD}, v65 offset:{L_PT + 41*PT_ROW}")
    emit(42, Q1)
    PA, PB, PH = 70, 72, 74
    QA, QB = 76, 78
    tq, tp = 80, 82
    emit(0, W)
    cmul(a, PH, W, E128, tp); emit(8, PH)
    curP, curQ = W, Q1
    for r in range(1, 8):
        nP = PA if r % 2 else PB
        nQ = QA if r % 2 else QB
        cmul(a, nP, curP, E1, tp)
        cmul(a, nQ, curQ, Q1, tq)
        emit(r, nP)
        emit(41 + 1 + r, nQ)
        cmul(a, PH, nP, E128, tp)
        emit(8 + r, PH)
        curP, curQ = nP, nQ
    ops = []
    U0, U1 = 70, 72
    def qstep(b):
        nonlocal curQ
        nQ = QA if curQ != QA else QB
        cmul(a, nQ, curQ, Q1, tq); emit(41 + b, nQ); curQ = nQ
    cmul(a, U0, W, E256, tp)
    qstep(9)
    emit(16, U0); cmul(a, PH, U0, E128, tp); emit(20, PH)
    cur = U0
    for r in range(1, 4):
        nx = U1 if cur == U0 else U0
        cmul(a, nx, cur, E2, tp)
        qstep(9 + r)
        emit(16 + r, nx); cmul(a, PH, nx, E128, tp); emit(20 + r, PH)
        cur = nx
    V0, V1 = 84, 86
    cmul(a, V0, W, E512, tp)
    qstep(13)
    cmul(a, V1, V0, E4, tp)
    emit(24, V0); emit(25, V1)
    for u in range(1, 4):
        cmul(a, V0, V0, E128, tp)
        cmul(a, V1, V1, E128, tq)
        emit(24 + 2*u, V0); emit(25 + 2*u, V1)
    X0 = 88
    cmul(a, X0, W, E1024, tp)
    qstep(14)
    emit(32, X0)
    cmul(a, X0, X0, E128, tp)
    qstep(15)
    emit(33, X0)
    for r in range(2, 9):
        cmul(a, X0, X0, E128, tp)
        emit(32 + r, X0)
    a(f"s_mul_i32 s{sT2}, s{sCH}, {KT_CH}")
    a(f"s_add_u32 s{sT2}, s{sT2}, {L_KT}")
    a("v_mov_b32 v90, 0")
    a("v_mov_b32 v91, 0")
    a("v_mov_b32 v92, 0")
    a("v_mov_b32 v93, 0")
    a(f"v_mov_b32 v94, s{sT2}")
    a.lds("ds_write_b128 v94, v[90:93]")
    a.drain_lg()
    a("s_barrier")
    a(f"v_and_b32 v64, 15, v{vLANE}")
    a(f"v_lshrrev_b32 v65, 4, v{vLANE}")
    a(f"v_mul_u32_u24 v66, {PT_ROW}, v64")
    a(f"v_lshl_add_u32 v66, v65, 4, v66")
    a(f"s_mul_i32 s{sT0}, s{sCH}, {PT_CH}")
    a(f"v_add_u32 v66, s{sT0}, v66")
    a(f"s_mul_i32 s{sT0}, s{sHV}, {16*PT_ROW}")
    a(f"v_add_u32 v67, s{sT0}, v66")
    a(f"s_lshl_b32 s{sT0}, s{sT0}, 1")
    a(f"v_add_u32 v68, s{sT0}, v66")
    FA, FB, FQ = 96, 128, 160
    for g in range(8):
        a.lds(f"ds_read_b128 v[{FQ+4*g}:{FQ+4*g+3}], v66 offset:{L_PT + 41*PT_ROW + 64*g}", f"q{g}")
        a.lds(f"ds_read_b128 v[{FA+4*g}:{FA+4*g+3}], v67 offset:{L_PT + 64*g}", f"q{g}")
        a.lds(f"ds_read_b128 v[{FB+4*g}:{FB+4*g+3}], v68 offset:{L_PT + 64*g}", f"q{g}")
        if g >= 3:
            kgen_mfma(a, g - 3, FA, FB, FQ)
    kt_addr(a)
    for g in range(5, 8):
        kgen_mfma(a, g, FA, FB, FQ)
    a("s_nop 7")
    a("v_cvt_pk_bf16_f32 v90, v192, v193")
    a("v_cvt_pk_bf16_f32 v91, v194, v195")
    a("v_cvt_pk_bf16_f32 v92, v196, v197")
    a("v_cvt_pk_bf16_f32 v93, v198, v199")
    for t in range(2):
        for r in range(4):
            reg = 90 + 2*t + (r >> 1)
            ins = "ds_write_b16_d16_hi" if (r & 1) else "ds_write_b16"
            a.lds(f"{ins} v{70 + 4*t + r}, v{reg}")
    expansion_addr(a)
    a.drain_lg()
    a("s_barrier")
    expansion(a)

def kgen_mfma(a, g, FA, FB, FQ):
    a.wait_lg(f"q{g}")
    ca = "0" if g == 0 else "v[192:195]"
    cb = "0" if g == 0 else "v[196:199]"
    a(f"v_mfma_f32_16x16x32_bf16 v[192:195], v[{FA+4*g}:{FA+4*g+3}], v[{FQ+4*g}:{FQ+4*g+3}], {ca}")
    a(f"v_mfma_f32_16x16x32_bf16 v[196:199], v[{FB+4*g}:{FB+4*g+3}], v[{FQ+4*g}:{FQ+4*g+3}], {cb}")

def kt_addr(a):
    b, q = 64, 65
    a(f"s_cmp_eq_u32 s{sHV}, 0")
    a("s_cbranch_scc0 L_kt_hv1")
    a(f"v_and_b32 v86, 1, v{q}")
    a(f"v_lshlrev_b32 v86, 2, v86")
    a(f"v_lshrrev_b32 v87, 1, v{q}")
    a(f"v_lshl_add_u32 v86, v87, 7, v86")
    a(f"v_lshl_add_u32 v80, v{b}, 3, v86")
    a("v_mov_b32 v81, 1")
    a("v_mov_b32 v82, 2")
    a("v_mov_b32 v83, v80")
    a("v_mov_b32 v84, 1")
    a("v_mov_b32 v85, 2")
    a("s_branch L_kt_done")
    a.label("L_kt_hv1")
    a(f"v_cmp_gt_u32 vcc, 2, v{q}")
    a(f"v_lshlrev_b32 v86, 6, v{q}")
    a(f"v_lshlrev_b32 v87, 1, v{b}")
    a(f"v_lshlrev_b32 v88, 2, v{b}")
    a(f"v_cndmask_b32 v87, v87, v88, vcc")
    a(f"v_add3_u32 v80, v86, v87, s{sP0}") if False else None
    a(f"v_add_u32 v80, v86, v87")
    a(f"v_add_u32 v80, 0x100, v80")
    a("v_mov_b32 v81, 1")
    a("v_mov_b32 v82, 32")
    a("v_mov_b32 v88, 2")
    a("v_cndmask_b32 v82, v82, v88, vcc")
    a(f"v_add_u32 v83, v86, v{b}")
    a(f"v_add_u32 v83, 0x200, v83")
    a("v_mov_b32 v84, 16")
    a("v_mov_b32 v85, 16")
    a("v_mov_b32 v88, 32")
    a("v_cndmask_b32 v85, v85, v88, vcc")
    a(f"v_cmp_eq_u32 vcc, 3, v{q}")
    a(f"v_add_u32 v88, 0x290, v{b}")
    a("v_mov_b32 v89, 0")
    a("v_cndmask_b32 v83, v83, v88, vcc")
    a("v_cndmask_b32 v84, v84, v89, vcc")
    a("v_cndmask_b32 v85, v85, v89, vcc")
    a.label("L_kt_done")
    a(f"s_add_u32 s{sT3}, s{sT2}, 16")
    for t, (B, S1, S2) in enumerate(((80, 81, 82), (83, 84, 85))):
        o = 70 + 4*t
        a(f"v_lshl_add_u32 v{o}, v{B}, 1, s{sT3}")
        a(f"v_lshl_add_u32 v{o+1}, v{S1}, 1, v{o}")
        a(f"v_lshl_add_u32 v{o+2}, v{S2}, 1, v{o}")
        a(f"v_lshl_add_u32 v{o+3}, v{S2}, 1, v{o+1}")

EA = 100
def expansion_addr(a):
    a(f"s_lshl_b32 s{sT0}, s{sHV}, 6")
    a(f"v_add_u32 v200, s{sT0}, v{vLANE}")
    a(f"v_lshlrev_b32 v201, 4, v200")
    C = 136 - 0x4300
    a(f"s_mov_b32 s{sT4}, {(136 - C) & 0xffffffff}")
    a(f"s_lshl_b32 s{sT5}, 1, 0") if False else None
    a(f"s_mul_i32 s{sT3}, s{sCH}, {KT_CH}")
    a(f"s_add_u32 s{sT3}, s{sT3}, {(L_KT + 2*C) & 0xffffffff}")
    a(f"v_subrev_u32 v202, 8, v201")
    a(f"v_cvt_f32_i32 v203, v202")
    a(f"v_add_u32 v202, {8 - C}, v202")
    for e in range(0, 24, 2):
        a(f"v_add_f32 v204, {fhex(float(e))}, v203")
        a(f"v_add_f32 v205, {fhex(float(e+1))}, v203")
        a(f"v_cvt_pk_bf16_f32 v204, v204, v205")
        a(f"v_bfe_i32 v205, v204, 0, 16")
        a(f"v_ashrrev_i32 v204, 16, v204")
        a(f"v_add_u32 v206, {e}, v202")
        a(f"v_add_u32 v207, {e+1}, v202")
        a(f"v_med3_i32 v205, v206, v205, s{sT4}")
        a(f"v_med3_i32 v204, v207, v204, s{sT4}")
        a(f"v_lshl_add_u32 v{EA+e}, v205, 1, s{sT3}")
        a(f"v_lshl_add_u32 v{EA+e+1}, v204, 1, s{sT3}")

def expansion(a):
    S = 128
    for e in range(1, 24):
        a.lds(f"ds_read_u16 v{S + e}, v{EA+e}", f"e{e}")
    a(f"s_lshl_b32 s{sT0}, s{sHV}, 6")
    a(f"v_add_u32 v86, s{sT0}, v{vLANE}")
    a(f"s_mul_i32 s{sT0}, s{sCH}, {TC_CH}")
    a(f"s_add_u32 s{sT0}, s{sT0}, {L_TC + 16}")
    a(f"v_lshl_add_u32 v87, v86, 5, s{sT0}")
    a(f"v_mul_u32_u24 v88, {TC_CP}, v{vLANE}")
    a(f"s_sub_u32 s{sT0}, s{sT0}, 16")
    a(f"v_add_u32 v88, s{sT0}, v88")
    a("v_mov_b32 v90, 0")
    a("v_mov_b32 v91, 0")
    a("v_mov_b32 v92, 0")
    a("v_mov_b32 v93, 0")
    a("s_mov_b64 exec, 0xff")
    a.lds("ds_write_b128 v88, v[90:93]")
    a("s_mov_b64 exec, -1")
    a(f"s_mov_b32 s{sT1}, 0x07060100")
    a.wait_lg("e23")
    XE, XO, YE, YO = 152, 162, 172, 182
    def D(dst, e):
        a(f"v_lshl_or_b32 v{dst}, v{S + e - 1}, 16, v{S + e}")
    for j in range(10):
        D(XE + j, 22 - 2*j); D(XO + j, 22 - 2*(j+1))
        D(YE + j, 23 - 2*j); D(YO + j, 23 - 2*(j+1))
    for c in range(8):
        E_, O_ = (XE, XO) if c % 2 == 0 else (YE, YO)
        for task in (0, 1):
            if c % 2 == 0: j0 = ((14 if task == 0 else 6) - c) // 2
            else: j0 = ((15 if task == 0 else 7) - c) // 2
            reg = E_ + j0 if j0 % 2 == 0 else O_ + j0 - 1
            a.lds(f"ds_write_b128 v87, v[{reg}:{reg+3}] offset:{c*TC_CP + 16*task}")

ACC1 = 128
FR1 = 32
vAS = 60
def gemm1(a, opts):
    a.cm("==== GEMM1: wait for xn of this row block ====")
    flag_wait(a, "g1", f"v_and_b32 v4, 15, v{vLANE}\nv_lshlrev_b32 v4, 2, v4\ns_lshl_b32 s{sT1}, s{sRB}, 8\ns_add_u32 s{sT1}, s{sT1}, {WS_F1}\nv_add_u32 v4, s{sT1}, v4", 1)
    a(f"s_lshl_b32 s{sT0}, s{sRB}, 2")
    a(f"s_add_u32 s{sT0}, s{sT0}, s{sWV}")
    a(f"s_lshl_b32 s{sP0}, s{sT0}, 15")
    a(f"s_add_u32 s{sP0}, s{sP0}, {WS_XF}")
    for s in range(32):
        if s and s % 4 == 0:
            a(f"s_add_u32 s{sP0}, s{sP0}, 4096")
        a.vmem(f"buffer_load_dwordx4 a[{4*s}:{4*s+3}], v{vL16}, s[{S_WS}:{S_WS+3}], s{sP0} offen offset:{(s%4)*1024} sc0 sc1", f"xf{s}")
    a(f"s_mul_i32 s{sP1}, s{sT0}, {112*1024}")
    a(f"s_mul_i32 s{sT1}, s{sCS}, {7*1024}")
    a(f"s_add_u32 s{sP1}, s{sP1}, s{sT1}")
    a(f"s_add_u32 s{sP1}, s{sP1}, {WS_HF}")
    a(f"v_lshrrev_b32 v4, 4, v{vLANE}")
    a(f"v_and_b32 v5, 1, v4")
    a(f"v_mul_u32_u24 v5, {U_OFF}, v5")
    a(f"v_lshrrev_b32 v4, 1, v4")
    a(f"v_lshlrev_b32 v4, 3, v4")
    a(f"v_bfe_u32 v6, v{vLANE}, 2, 2")
    a(f"v_add_u32 v4, v4, v6")
    a(f"v_mul_u32_u24 v4, 224, v4")
    a(f"v_and_b32 v6, 3, v{vLANE}")
    a(f"v_lshl_add_u32 v4, v6, 3, v4")
    a(f"v_add_u32 v4, v4, v5")
    for sl in range(3):
        a(f"v_add_u32 v{vAS+sl}, {L_RING + sl*SLOT}, v4")
    def rd(t, s):
        ch, kk = s // 4, s % 4
        for p in range(2):
            off = (16*kk + 4*p) * 224 + 32*t
            a.lds(f"ds_read_b64_tr_b16 v[{FR1+4*t+2*p}:{FR1+4*t+2*p+1}], v{vAS + ch%3} offset:{off}", f"A{t}_{s}")
    a.wait_vm("w0")
    a("s_barrier")
    for t in range(7): rd(t, 0)
    for s in range(32):
        ch, kk = s // 4, s % 4
        for t in range(7):
            if t == 0:
                a.wait_vm(f"xf{s}")
            if kk == 2 and t == 0 and ch + 1 < 8:
                a.wait_vm(f"w{ch+1}")
                a("s_barrier")
                if ch >= 1 and ch + 2 < 8:
                    dma_w_chunk(a, ch + 2)
            a.wait_lg(f"A{t}_{s}")
            acc = ACC1 + 16*t
            c = "0" if s == 0 else f"v[{acc}:{acc+15}]"
            a(f"v_mfma_f32_32x32x16_bf16 v[{acc}:{acc+15}], v[{FR1+4*t}:{FR1+4*t+3}], a[{4*s}:{4*s+3}], {c}")
            if s + 1 < 32:
                rd(t, s + 1)
    a.cm("gelu * up -> h fragments")
    c1 = -2.0 * math.log2(math.e) * math.sqrt(2.0 / math.pi)
    c2 = c1 * 0.044715
    a(f"s_mov_b32 s{sC1}, {fhex(c1)}")
    a(f"s_mov_b32 s{sC1+1}, {fhex(c1)}")
    a(f"s_mov_b32 s{sC2}, {fhex(c2)}")
    a(f"s_mov_b32 s{sC2+1}, {fhex(c2)}")
    a(f"v_mov_b32 v62, s{sC1}")
    a(f"v_mov_b32 v63, s{sC1}")
    a("s_nop 7")
    for t in range(7):
        acc = ACC1 + 16*t
        tb = 32 + 16 * (t % 2)
        G = [acc + 2*p for p in range(4)]; U = [acc + 8 + 2*p for p in range(4)]
        T = [64 + 8*(t % 2) + 2*p for p in range(4)]
        O = 80 + 4*(t % 2)
        for p in range(4): a(f"v_pk_mul_f32 v[{T[p]}:{T[p]+1}], v[{G[p]}:{G[p]+1}], v[{G[p]}:{G[p]+1}]")
        for p in range(4): a(f"v_pk_fma_f32 v[{T[p]}:{T[p]+1}], v[{T[p]}:{T[p]+1}], s[{sC2}:{sC2+1}], v[62:63]")
        for p in range(4): a(f"v_pk_mul_f32 v[{T[p]}:{T[p]+1}], v[{T[p]}:{T[p]+1}], v[{G[p]}:{G[p]+1}]")
        for p in range(4):
            a(f"v_exp_f32 v{T[p]}, v{T[p]}")
            a(f"v_exp_f32 v{T[p]+1}, v{T[p]+1}")
        for p in range(4): a(f"v_pk_mul_f32 v[{G[p]}:{G[p]+1}], v[{G[p]}:{G[p]+1}], v[{U[p]}:{U[p]+1}]")
        for p in range(4): a(f"v_pk_add_f32 v[{T[p]}:{T[p]+1}], v[{T[p]}:{T[p]+1}], 1.0 op_sel_hi:[1,0]")
        for p in range(4):
            a(f"v_rcp_f32 v{T[p]}, v{T[p]}")
            a(f"v_rcp_f32 v{T[p]+1}, v{T[p]+1}")
        a("s_nop 0")
        for p in range(4): a(f"v_pk_mul_f32 v[{G[p]}:{G[p]+1}], v[{G[p]}:{G[p]+1}], v[{T[p]}:{T[p]+1}]")
        for p in range(4): a(f"v_cvt_pk_bf16_f32 v{O+p}, v{G[p]}, v{G[p]+1}")
        if t % 4 == 0 and t:
            a(f"s_add_u32 s{sP1}, s{sP1}, 4096")
        a.vmem(f"buffer_store_dwordx4 v[{O}:{O+3}], v{vL16}, s[{S_WS}:{S_WS+3}], s{sP1} offen offset:{(t%4)*1024} sc0 sc1", "hst")

def conv(a, opts):
    a.cm("==== convolution ====")
    flag_wait(a, "c1", f"v_lshrrev_b32 v4, 2, v{vLANE}\nv_lshlrev_b32 v4, 8, v4\nv_and_b32 v5, 3, v{vLANE}\nv_lshl_add_u32 v4, v5, 4, v4\nv_add_u32 v4, {WS_F1}, v4", 4)
    a("s_cmp_lg_u32 s2, 0")
    a("s_cbranch_scc1 L_noepoch")
    a(f"s_cmp_lg_u32 s{sWV}, 0")
    a("s_cbranch_scc1 L_noepoch")
    a("v_mov_b32 v4, 0")
    a(f"v_mov_b32 v5, s{sNONCE}")
    a("s_mov_b64 exec, 1")
    a(f"buffer_store_dword v5, v4, s[{S_WS}:{S_WS+3}], 0 offen sc0 sc1")
    a("s_mov_b64 exec, -1")
    a.label("L_noepoch")
    a(f"v_lshlrev_b32 v4, 13, v0")
    a(f"s_lshl_b32 s{sT0}, s{sCP}, 5")
    a(f"s_add_u32 s{sT0}, s{sT0}, {WS_XT}")
    a.vmem(f"buffer_load_dwordx4 v[8:11], v4, s[{S_WS}:{S_WS+3}], s{sT0} offen sc0 sc1", "xt")
    a.vmem(f"buffer_load_dwordx4 v[12:15], v4, s[{S_WS}:{S_WS+3}], s{sT0} offen offset:16 sc0 sc1", "xt")
    a("v_mov_b32 v16, 0")
    a("v_mov_b32 v17, 0")
    a("v_mov_b32 v18, 0")
    a("v_mov_b32 v19, 0")
    a(f"v_lshrrev_b32 v5, 5, v{vLANE}")
    a(f"v_mul_u32_u24 v5, {XC_CH}, v5")
    a(f"v_and_b32 v6, 31, v{vLANE}")
    a(f"v_lshl_add_u32 v5, v6, 4, v5")
    a(f"v_add_u32 v5, {L_XC}, v5")
    a.lds(f"ds_write_b128 v5, v[16:19]")
    a(f"v_lshlrev_b32 v6, 4, v0")
    a(f"v_add_u32 v6, {L_XC}, v6")
    a.wait_vm("xt")
    a.lds(f"ds_write_b128 v6, v[8:11] offset:512")
    a.lds(f"ds_write_b128 v6, v[12:15] offset:{XC_CH + 512}")
    a.wait_vm("hst")
    a.drain_lg()
    a("s_barrier")
    flag_store(a, f"s_lshl_b32 s{sT1}, s{sRB}, 8\ns_lshl_b32 s{sT2}, s{sCS}, 2\ns_add_u32 s{sT1}, s{sT1}, s{sT2}\ns_add_u32 s{sT1}, s{sT1}, {WS_F2}", "f2")
    b, q = 4, 5
    a(f"v_and_b32 v{b}, 15, v{vLANE}")
    a(f"v_lshrrev_b32 v{q}, 4, v{vLANE}")
    a(f"v_and_b32 v6, 7, v{b}")
    a(f"v_mul_u32_u24 v6, {TC_CP}, v6")
    a(f"v_lshrrev_b32 v7, 1, v{q}")
    a(f"v_lshlrev_b32 v7, 1, v7")
    a(f"v_and_b32 v8, 1, v{q}")
    a(f"v_sub_u32 v7, v7, v8")
    a(f"v_lshrrev_b32 v8, 3, v{b}")
    a(f"v_add_u32 v7, v7, v8")
    a(f"v_add_u32 v7, 1, v7")
    a(f"v_lshl_add_u32 v6, v7, 4, v6")
    a(f"s_mul_i32 s{sT0}, s{sCH}, {TC_CH}")
    a(f"s_lshl_b32 s{sT1}, s{sHV}, 8")
    a(f"s_add_u32 s{sT0}, s{sT0}, s{sT1}")
    a(f"v_add_u32 v20, s{sT0}, v6")
    a(f"v_lshrrev_b32 v7, 1, v{q}")
    a(f"v_sub_u32 v7, v{b}, v7")
    a(f"v_lshlrev_b32 v7, 5, v7")
    a(f"v_and_b32 v8, 1, v{q}")
    a(f"v_lshl_add_u32 v7, v8, 4, v7")
    a(f"s_mul_i32 s{sT0}, s{sCH}, {XC_CH}")
    a(f"s_add_u32 s{sT0}, s{sT0}, {L_XC + 512 - 64*3}")
    a(f"s_lshl_b32 s{sT1}, s{sHV}, 8")
    a(f"s_sub_u32 s{sT0}, s{sT0}, s{sT1}")
    a(f"v_add_u32 v21, s{sT0}, v7")
    ACC = 32
    FA = [64, 128]; FB = [96, 160]
    def loads(rp, buf):
        for k in range(8):
            a.lds(f"ds_read_b128 v[{FA[buf]+4*k}:{FA[buf]+4*k+3}], v20 offset:{64*rp + 512*k}", f"c{rp}_{k}")
            a.lds(f"ds_read_b128 v[{FB[buf]+4*k}:{FB[buf]+4*k+3}], v21 offset:{512*k + 64*(3-rp)}", f"c{rp}_{k}")
    loads(0, 0)
    for rp in range(4):
        buf = rp % 2
        pairs = sorted([(j, kap) for j in range(8) for kap in range(j + 1)], key=lambda p: (max(p[1], p[0]-p[1]), p[0]))
        nxt = list(range(8)) if rp < 3 else []
        first = {j: True for j in range(8)}
        for n, (j, kap) in enumerate(pairs):
            mu = j - kap
            a.wait_lg(f"c{rp}_{max(kap, mu)}")
            acc = ACC + 4*j
            c = "0" if (rp == 0 and first[j]) else f"v[{acc}:{acc+3}]"
            first[j] = False
            a(f"v_mfma_f32_16x16x32_bf16 v[{acc}:{acc+3}], v[{FA[buf]+4*kap}:{FA[buf]+4*kap+3}], v[{FB[buf]+4*mu}:{FB[buf]+4*mu+3}], {c}")
            if rp < 3 and n >= 4 and (n - 4) % 4 == 0 and nxt:
                k = nxt.pop(0)
                nb = 1 - buf
                a.lds(f"ds_read_b128 v[{FA[nb]+4*k}:{FA[nb]+4*k+3}], v20 offset:{64*(rp+1) + 512*k}", f"c{rp+1}_{k}")
                a.lds(f"ds_read_b128 v[{FB[nb]+4*k}:{FB[nb]+4*k+3}], v21 offset:{512*k + 64*(3-rp-1)}", f"c{rp+1}_{k}")
        assert not nxt
    a("s_nop 7")
    a(f"s_lshl_b32 s{sT0}, s{sWV}, 12")
    a(f"s_add_u32 s{sT0}, s{sT0}, {L_RED}")
    a(f"v_add_u32 v6, s{sT0}, v{vL16}")
    a(f"s_xor_b32 s{sT0}, s{sWV}, 1")
    a(f"s_lshl_b32 s{sT0}, s{sT0}, 12")
    a(f"s_add_u32 s{sT0}, s{sT0}, {L_RED}")
    a(f"v_add_u32 v7, s{sT0}, v{vL16}")
    a(f"s_cmp_eq_u32 s{sHV}, 0")
    a("s_cbranch_scc0 L_red_hv1")
    for i in range(4):
        a(f"ds_write_b128 v6, v[{ACC+16+4*i}:{ACC+16+4*i+3}] offset:{1024*i}")
    a("s_branch L_red_w")
    a.label("L_red_hv1")
    for i in range(4):
        a(f"ds_write_b128 v6, v[{ACC+4*i}:{ACC+4*i+3}] offset:{1024*i}")
        for r in range(4):
            pass
    for i in range(16):
        a(f"v_mov_b32 v{ACC+i}, v{ACC+16+i}")
    a.label("L_red_w")
    a("s_waitcnt lgkmcnt(0)")
    a.lg.drain()
    a("s_barrier")
    for i in range(4):
        a.lds(f"ds_read_b128 v[{64+4*i}:{64+4*i+3}], v7 offset:{1024*i}", "red")
    a(f"v_lshlrev_b32 v8, 5, v{b}")
    a(f"v_lshl_add_u32 v8, v{q}, 3, v8")
    a(f"s_lshl_b32 s{sT1}, s{sHV}, 11")
    a(f"s_mul_i32 s{sT0}, s{sCH}, {XC_CH}")
    a(f"s_add_u32 s{sT0}, s{sT0}, {L_XC + 512}")
    a(f"s_add_u32 s{sT0}, s{sT0}, s{sT1}")
    a(f"v_add_u32 v9, s{sT0}, v8")
    for i in range(4):
        a.lds(f"ds_read_b64 v[{80+2*i}:{80+2*i+1}], v9 offset:{512*i}", "xn")
    a(f"s_lshl_b32 s{sT2}, s{sDSK}, 16")
    a(f"s_and_b32 s{sT3}, s{sDSK}, s{sMASK}")
    a(f"s_cmp_eq_u32 s{sCH}, 0")
    a(f"s_cselect_b32 s{sC1}, s{sT2}, s{sT3}")
    a(f"s_mov_b32 s{sC1+1}, s{sC1}")
    a(f"s_lshl_b32 s{sT0}, s{sCP}, 1")
    a(f"s_add_u32 s{sT0}, s{sT0}, s{sCH}")
    a(f"s_lshl_b32 s{sT0}, s{sT0}, 12")
    a(f"s_add_u32 s{sT0}, s{sT0}, s{sT1}")
    a(f"s_add_u32 s{sT0}, s{sT0}, {WS_YT}")
    a.wait_lg("red")
    for i in range(4):
        for p in range(2):
            a(f"v_pk_add_f32 v[{ACC+4*i+2*p}:{ACC+4*i+2*p+1}], v[{ACC+4*i+2*p}:{ACC+4*i+2*p+1}], v[{64+4*i+2*p}:{64+4*i+2*p+1}]")
    a.wait_lg("xn")
    for i in range(4):
        for p in range(2):
            x = 80 + 2*i + p
            a(f"v_lshlrev_b32 v90, 16, v{x}")
            a(f"v_and_b32 v91, s{sMASK}, v{x}")
            a(f"v_pk_fma_f32 v[{ACC+4*i+2*p}:{ACC+4*i+2*p+1}], v[90:91], s[{sC1}:{sC1+1}], v[{ACC+4*i+2*p}:{ACC+4*i+2*p+1}]")
        a(f"v_cvt_pk_bf16_f32 v{92+2*i}, v{ACC+4*i}, v{ACC+4*i+1}")
        a(f"v_cvt_pk_bf16_f32 v{93+2*i}, v{ACC+4*i+2}, v{ACC+4*i+3}")
        a.vmem(f"buffer_store_dwordx2 v[{92+2*i}:{93+2*i}], v8, s[{S_WS}:{S_WS+3}], s{sT0} offen offset:{512*i} sc0 sc1", "yst")
    a.wait_vm("yst")
    a("s_barrier")
    flag_store(a, f"s_lshl_b32 s{sT1}, s{sXC}, 8\ns_lshl_b32 s{sT2}, s{sJ}, 2\ns_add_u32 s{sT1}, s{sT1}, s{sT2}\ns_add_u32 s{sT1}, s{sT1}, {WS_F3}", "f3")

def gemm2(a, opts):
    a.cm("==== GEMM2 ====")
    RING2 = 16
    vDW = 22
    a(f"v_lshrrev_b32 v4, 3, v{vLANE}")
    a(f"v_and_b32 v5, 7, v{vLANE}")
    a(f"v_bfe_u32 v6, v4, 1, 1")
    a(f"v_lshlrev_b32 v6, 2, v6")
    a(f"v_xor_b32 v5, v5, v6")
    a(f"v_lshlrev_b32 v4, 10, v4")
    a(f"v_lshl_add_u32 v{vDW}, v5, 4, v4")
    a(f"s_mul_i32 s{sP0}, s{sWV}, {28*16*1024}")
    a(f"s_lshl_b32 s{sT0}, s{sCT}, 7")
    a(f"s_add_u32 s{sP0}, s{sP0}, s{sT0}")
    a(f"s_lshl_b32 s{sP2}, s{sWV}, 15")
    def dma_d(ks):
        slot = ks % RING2
        for i in range(2):
            a(f"s_add_u32 m0, s{sP2}, {slot*2048 + i*1024}")
            a(f"s_add_u32 s{sT0}, s{sP0}, {(16*ks + 8*i)*1024}")
            a.vmem(f"buffer_load_dwordx4 v{vDW}, s[{S_D}:{S_D+3}], s{sT0} offen lds", f"d{ks}")
    PD = 12
    for ks in range(PD): dma_d(ks)
    mt, nt = None, None
    a(f"v_and_b32 v4, 31, v{vLANE}")
    a(f"v_lshrrev_b32 v5, 5, v{vLANE}")
    a(f"v_lshlrev_b32 v6, 10, v4")
    a(f"v_lshl_add_u32 v24, v5, 3, v6")
    a(f"s_lshl_b32 s{sT0}, s{sRT}, 6")
    a(f"s_lshl_b32 s{sT1}, s{sHV}, 5")
    a(f"s_add_u32 s{sT0}, s{sT0}, s{sT1}")
    a(f"s_lshl_b32 s{sP3}, s{sT0}, 10")
    a(f"s_lshl_b32 s{sT1}, s{sCT}, 7")
    a(f"s_add_u32 s{sP3}, s{sP3}, s{sT1}")
    a(f"s_lshl_b32 s{sT1}, s{sCH}, 6")
    a(f"s_add_u32 s{sP3}, s{sP3}, s{sT1}")
    XR = 26
    for rr in range(4):
        a.vmem(f"buffer_load_dwordx2 v[{XR+2*rr}:{XR+2*rr+1}], v24, s[{S_X}:{S_X+3}], s{sP3} offen offset:{16*rr}", "xr")
    flag_wait(a, "g2", f"v_and_b32 v4, 15, v{vLANE}\nv_lshlrev_b32 v4, 2, v4\ns_lshr_b32 s{sT1}, s{sRT}, 1\ns_lshl_b32 s{sT1}, s{sT1}, 8\ns_add_u32 s{sT1}, s{sT1}, {WS_F2}\nv_add_u32 v4, s{sT1}, v4", 1)
    a(f"s_mul_i32 s{sP1}, s{sRT}, {2*112*1024}")
    a(f"s_mul_i32 s{sT0}, s{sWV}, {28*1024}")
    a(f"s_add_u32 s{sP1}, s{sP1}, s{sT0}")
    a(f"s_add_u32 s{sP1}, s{sP1}, {WS_HF}")
    a(f"s_add_u32 s{sT5}, s{sP1}, {112*1024}")
    HB = 64
    def ldh(ks):
        sl = ks % PD
        a(f"s_add_u32 s{sT0}, s{sP1}, {ks*1024}")
        a.vmem(f"buffer_load_dwordx4 v[{HB+8*sl}:{HB+8*sl+3}], v{vL16}, s[{S_WS}:{S_WS+3}], s{sT0} offen sc0 sc1", f"h{ks}")
        a(f"s_add_u32 s{sT0}, s{sT5}, {ks*1024}")
        a.vmem(f"buffer_load_dwordx4 v[{HB+8*sl+4}:{HB+8*sl+7}], v{vL16}, s[{S_WS}:{S_WS+3}], s{sT0} offen sc0 sc1", f"h{ks}")
    for ks in range(PD): ldh(ks)
    a(f"v_lshrrev_b32 v4, 4, v{vLANE}")
    a(f"v_lshrrev_b32 v5, 1, v4")
    a(f"v_bfe_u32 v6, v{vLANE}, 2, 2")
    a(f"v_lshl_add_u32 v5, v5, 2, v6")
    a(f"v_lshlrev_b32 v5, 7, v5")
    a(f"v_and_b32 v4, 1, v4")
    a(f"v_lshlrev_b32 v4, 1, v4")
    a(f"v_bfe_u32 v7, v{vLANE}, 1, 1")
    a(f"v_add_u32 v4, v4, v7")
    a(f"v_lshrrev_b32 v6, 1, v6")
    a(f"v_lshlrev_b32 v6, 2, v6")
    a(f"v_xor_b32 v7, v4, v6")
    a(f"v_xor_b32 v6, 4, v7")
    a(f"v_and_b32 v4, 1, v{vLANE}")
    a(f"v_lshl_add_u32 v5, v4, 3, v5")
    a(f"v_add_u32 v5, s{sP2}, v5")
    a(f"v_lshl_add_u32 v34, v7, 4, v5")
    a(f"v_lshl_add_u32 v35, v6, 4, v5")
    FA2 = [36, 44]
    ACC = 192
    def rda(ks):
        buf = ks % 2
        a.wait_vm(f"d{ks}")
        for m in range(2):
            for p in range(2):
                a.lds(f"ds_read_b64_tr_b16 v[{FA2[buf]+4*m+2*p}:{FA2[buf]+4*m+2*p+1}], v{34+m} offset:{(ks % RING2)*2048 + p*1024}", f"a{ks}")
    rda(0)
    for ks in range(28):
        if ks + 1 < 28: rda(ks + 1)
        a.wait_vm(f"h{ks}")
        a.wait_lg(f"a{ks}")
        buf = ks % 2; sl = ks % PD
        for m in range(2):
            for n in range(2):
                acc = ACC + 16*(2*m + n)
                c = "0" if ks == 0 else f"v[{acc}:{acc+15}]"
                a(f"v_mfma_f32_32x32x16_bf16 v[{acc}:{acc+15}], v[{FA2[buf]+4*m}:{FA2[buf]+4*m+3}], v[{HB+8*sl+4*n}:{HB+8*sl+4*n+3}], {c}")
        if ks + PD < 28:
            dma_d(ks + PD)
            ldh(ks + PD)
    flag_wait(a, "g3", f"v_and_b32 v4, 31, v{vLANE}\nv_lshlrev_b32 v4, 2, v4\ns_lshl_b32 s{sT1}, s{sCT}, 8\ns_add_u32 s{sT1}, s{sT1}, {WS_F3}\nv_add_u32 v4, s{sT1}, v4", 1)
    a(f"v_and_b32 v4, 31, v{vLANE}")
    a(f"v_lshrrev_b32 v5, 5, v{vLANE}")
    a(f"v_lshlrev_b32 v4, 1, v4")
    a(f"v_lshl_add_u32 v25, v5, 14, v4")
    a(f"s_lshl_b32 s{sT0}, s{sCT}, 6")
    a(f"s_lshl_b32 s{sT1}, s{sCH}, 5")
    a(f"s_add_u32 s{sT0}, s{sT0}, s{sT1}")
    a(f"s_lshl_b32 s{sT0}, s{sT0}, 12")
    a(f"s_lshl_b32 s{sT1}, s{sRT}, 7")
    a(f"s_add_u32 s{sT0}, s{sT0}, s{sT1}")
    a(f"s_lshl_b32 s{sT1}, s{sHV}, 6")
    a(f"s_add_u32 s{sT0}, s{sT0}, s{sT1}")
    a(f"s_add_u32 s{sT0}, s{sT0}, {WS_YT}")
    YR = 64
    for rr in range(4):
        for i in range(4):
            a(f"s_add_u32 s{sT1}, s{sT0}, {(8*rr + i)*4096}")
            a.vmem(f"buffer_load_ushort v{YR + 4*rr + i}, v25, s[{S_WS}:{S_WS+3}], s{sT1} offen sc0 sc1", "yr")
    a("s_nop 7")
    a(f"s_lshl_b32 s{sT1}, s{sWV}, 12")
    a(f"v_add_u32 v6, s{sT1}, v{vL16}")
    for v in range(4):
        a(f"s_cmp_eq_u32 s{sWV}, {v}")
        a(f"s_cbranch_scc1 L_skipw{v}")
        for i in range(4):
            a(f"ds_write_b128 v6, v[{ACC+16*v+4*i}:{ACC+16*v+4*i+3}] offset:{v*16384 + i*1024}")
        a.label(f"L_skipw{v}")
    for v in range(4):
        a(f"s_cmp_lg_u32 s{sWV}, {v}")
        a(f"s_cbranch_scc1 L_skipo{v}")
        for i in range(16):
            a(f"v_mov_b32 v{96+i}, v{ACC+16*v+i}")
        a.label(f"L_skipo{v}")
    a("s_waitcnt lgkmcnt(0)")
    a("s_barrier")
    a(f"s_lshl_b32 s{sT1}, s{sWV}, 14")
    a(f"v_add_u32 v6, s{sT1}, v{vL16}")
    for d in range(1, 4):
        a(f"s_add_u32 s{sT2}, s{sWV}, {d}")
        a(f"s_and_b32 s{sT2}, s{sT2}, 3")
        a(f"s_lshl_b32 s{sT2}, s{sT2}, 12")
        a(f"v_add_u32 v7, s{sT2}, v6")
        for i in range(4):
            a.lds(f"ds_read_b128 v[{112 + 16*(d-1) + 4*i}:{112 + 16*(d-1) + 4*i + 3}], v7 offset:{i*1024}", f"r{d}")
    for d in range(1, 4):
        a.wait_lg(f"r{d}")
        for p in range(8):
            a(f"v_pk_add_f32 v[{96+2*p}:{96+2*p+1}], v[{96+2*p}:{96+2*p+1}], v[{112+16*(d-1)+2*p}:{112+16*(d-1)+2*p+1}]")
    a.wait_vm("yr")
    a.wait_vm("xr")
    for rr in range(4):
        for p in range(2):
            acc = 96 + 4*rr + 2*p
            src = XR + 2*rr + p
            a(f"v_lshlrev_b32 v4, 16, v{src}")
            a(f"v_and_b32 v5, s{sMASK}, v{src}")
            a(f"v_lshlrev_b32 v6, 16, v{YR + 4*rr + 2*p}")
            a(f"v_lshlrev_b32 v7, 16, v{YR + 4*rr + 2*p + 1}")
            a(f"v_pk_add_f32 v[{acc}:{acc+1}], v[{acc}:{acc+1}], v[4:5]")
            a(f"v_pk_add_f32 v[{acc}:{acc+1}], v[{acc}:{acc+1}], v[6:7]")
        a(f"v_cvt_pk_bf16_f32 v{8+2*rr}, v{96+4*rr}, v{96+4*rr+1}")
        a(f"v_cvt_pk_bf16_f32 v{9+2*rr}, v{96+4*rr+2}, v{96+4*rr+3}")
        a.vmem(f"buffer_store_dwordx2 v[{8+2*rr}:{9+2*rr}], v24, s[{S_O}:{S_O+3}], s{sP3} offen offset:{16*rr}", "ost")

def build(opts):
    a = Asm()
    stop = opts.get("stop", 99)
    prologue(a)
    layernorm(a)
    if stop >= 1:
        kgen(a)
        if opts.get("dump_tc"):
            dump_lds(a, 69632, 0, 0, "tc")
    if stop >= 2:
        gemm1(a, opts)
    if stop >= 3:
        conv(a, opts)
    if stop >= 4:
        gemm2(a, opts)
    a("s_waitcnt vmcnt(0) lgkmcnt(0)")
    a.label("L_end")
    a("s_endpgm")
    hdr = open("parallel_sum__ssm_conv_s4__glu_gated_geglu__prompt.s.ref").read().split("\n")
    head = []
    for line in hdr:
        if line.startswith("; @launch"):
            head.append(f"; @launch grid=(256,1,1) block=(256,1,1) lds={LDS_BYTES}")
        elif line.startswith(";"):
            head.append(line)
        else:
            break
    s = "\n".join(head) + "\n"
    s += '.amdgcn_target "amdgcn-amd-amdhsa--gfx950"\n.text\n'
    s += f".globl {KNAME}\n.p2align 8\n.type {KNAME},@function\n{KNAME}:\n"
    s += a.text()
    s += f""".section .rodata,"a"
.p2align 6
.amdhsa_kernel {KNAME}
  .amdhsa_next_free_vgpr 512
  .amdhsa_next_free_sgpr 102
  .amdhsa_accum_offset 256
  .amdhsa_group_segment_fixed_size 0
  .amdhsa_kernarg_size 128
  .amdhsa_user_sgpr_count 2
  .amdhsa_user_sgpr_kernarg_segment_ptr 1
  .amdhsa_system_sgpr_workgroup_id_x 1
.end_amdhsa_kernel
"""
    return s

if __name__ == "__main__":
    opts = {}
    out = "parallel_sum__ssm_conv_s4__glu_gated_geglu__prompt.s"
    for arg in sys.argv[1:]:
        if arg.startswith("-o="): out = arg[3:]
        elif "=" in arg:
            k, v = arg.split("="); opts[k] = int(v)
    open(out, "w").write(build(opts))
    print("wrote", out)
```

```python
import sys, math, struct
from contextlib import contextmanager

KNAME = "parallel_sum__ssm_conv_s4__glu_gated_geglu__prompt_kernel"

WS_EPOCH = 0
WS_F1 = 0x1000
WS_F2 = 0x2000
WS_F3 = 0x3000
WS_XF = 0x100000
WS_XT = 0x300000
WS_HF = 0x500000
WS_YT = 0xD00000
WS_WDT = 0xF00000
WS_F5 = 0x5000
WS_F4 = 0x4000
WS_DBG = 0x1200000
WS_STAMP = 0x3000000
WS_SIZE = 0x4000000

SA = 16384
B_U = 6144 + 128
B_SZ = 2 * 6144 + 128
B_SLOT = [131072, 131072 + B_SZ, 0, SA, 2*SA, 3*SA, 4*SA, 5*SA]
L_PT = 5 * SA
PT_CH = 31008
PT_ROW = 544
L_LNX = L_PT + 2 * PT_CH
LNX_ROW = 1088
L_KT = 161024
KT_CH = 1392
L_TC = 5*16384 + 12416
TC_CH = 33280
TC_CP = 4160
L_XC = 65536
XC_CH = 4608
L_RED = 77824
assert L_TC + 2*TC_CH <= L_KT
LDS_BYTES = 163840

OPTS = {}

class Cnt:
    def __init__(self, name, mx):
        self.name, self.mx = name, mx
        self.ops = []; self.done = 0
    def issue(self, tag=None): self.ops.append(tag)
    def need(self, tag):
        idx = max(i for i, t in enumerate(self.ops) if t == tag)
        if idx < self.done: return None
        n = min(len(self.ops) - 1 - idx, self.mx)
        self.done = len(self.ops) - n
        return n
    def drain(self): self.done = len(self.ops)

class Asm:
    def __init__(self):
        self.L = []
        self.vm = Cnt("vmcnt", 63)
        self.lg = Cnt("lgkmcnt", 15)
    def __call__(self, s):
        for line in s.split("\n"):
            line = line.strip()
            if line: self.L.append("    " + line)
    def label(self, l): self.L.append(l + ":")
    def cm(self, s): self.L.append("    ; " + s)
    def vmem(self, s, tag=None): self(s); self.vm.issue(tag)
    def lds(self, s, tag=None): self(s); self.lg.issue(tag)
    def wait_vm(self, tag):
        n = self.vm.need(tag)
        if n is not None: self(f"s_waitcnt vmcnt({n})")
    def wait_lg(self, tag):
        n = self.lg.need(tag)
        if n is not None: self(f"s_waitcnt lgkmcnt({n})")
    def drain_vm(self): self("s_waitcnt vmcnt(0)"); self.vm.drain()
    def drain_lg(self): self("s_waitcnt lgkmcnt(0)"); self.lg.drain()
    def lg_known_drained(self): self.lg.drain()
    @contextmanager
    def group(self): yield
    def text(self): return "\n".join(self.L) + "\n"

class Rec:
    def __init__(self): self.atoms = []; self._g = None
    def _add(self, op):
        if self._g is not None: self._g.append(op)
        else: self.atoms.append([op])
    def __call__(self, s):
        for line in s.split("\n"):
            line = line.strip()
            if line: self._add(("__call__", line))
    def label(self, l): self._add(("label", l))
    def cm(self, s): self._add(("cm", s))
    def vmem(self, s, tag=None): self._add(("vmem", s, tag))
    def lds(self, s, tag=None): self._add(("lds", s, tag))
    def wait_vm(self, tag): self._add(("wait_vm", tag))
    def wait_lg(self, tag): self._add(("wait_lg", tag))
    def drain_vm(self): self._add(("drain_vm",))
    def drain_lg(self): self._add(("drain_lg",))
    def lg_known_drained(self): self._add(("lg_known_drained",))
    @contextmanager
    def group(self):
        if self._g is not None:
            yield; return
        self._g = []
        yield
        self.atoms.append(self._g); self._g = None

def play(a, atoms):
    for atom in atoms:
        with a.group():
            for op in atom: getattr(a, op[0])(*op[1:])

def weave(main, *fills):
    ins = [[] for _ in range(len(main) + 1)]
    for atoms, lo, hi in fills:
        n = len(atoms)
        hi = min(hi, len(main))
        for k, at in enumerate(atoms):
            pos = lo + (k * (hi - lo)) // max(n, 1)
            ins[pos].append(at)
    out = []
    for i, m in enumerate(main):
        out.append(m)
        out.extend(ins[i])
    out.extend(ins[len(main)])
    return out

def op_cost(op):
    if op[0] in ("wait_vm", "wait_lg", "drain_vm", "drain_lg"): return 4
    if op[0] not in ("__call__", "vmem", "lds"): return 0
    t = op[1].split()[0]
    if t.startswith("v_mfma"): return 8
    if t.startswith("ds_read_b64_tr"): return 6
    if t.startswith("ds_write_b128"): return 8
    if t.startswith("ds_"): return 4
    if t.startswith(("v_exp", "v_rcp", "v_sin", "v_cos", "v_sqrt", "v_log")): return 8
    if t.startswith("v_pk_"): return 24
    if t.startswith(("buffer_", "global_")): return 8
    return 4
def atom_cost(at): return sum(op_cost(o) for o in at)

def has_vmem(at): return any(o[0] == "vmem" for o in at)
def vm_extra(at): return OPTS.get("bextra", 0) if any(o[0] == "vmem" and str(o[2]).startswith("B") for o in at) else 0

def sched(gaps, streams, cap, gapcyc=32):
    st = [{"a": list(a), "lo": lo, "hi": min(hi, len(gaps)), "n": len(a), "k": 0} for a, lo, hi in streams if a]
    out = []
    sp = OPTS.get("vmsp", 0)
    t = 0; last = -10**9
    for g, atoms in enumerate(gaps):
        out.extend(atoms)
        used = sum(atom_cost(x) for x in atoms)
        if any(has_vmem(x) for x in atoms): last = t
        c = cap - used
        progress = True
        while progress:
            progress = False
            order = sorted((s_ for s_ in st if s_["lo"] <= g and s_["k"] < s_["n"]),
                           key=lambda s_: (s_["k"] / s_["n"]) - (g - s_["lo"] + 1) / max(1, s_["hi"] - s_["lo"]))
            for s_ in order:
                span = max(1, s_["hi"] - s_["lo"])
                want = -(-s_["n"] * (g - s_["lo"] + 1) // span)
                late = s_["n"] * (g - s_["lo"] - 2) // span
                at = s_["a"][s_["k"]]
                cost = atom_cost(at)
                forced = g >= s_["hi"] - 1
                if has_vmem(at) and not forced and t - last < sp: continue
                if forced or s_["k"] < late or (s_["k"] < want and cost <= c):
                    out.append(at); s_["k"] += 1; c -= cost; used += cost; progress = True
                    if has_vmem(at): last = t + vm_extra(at)
                    break
        t += max(gapcyc, used)
    for s_ in st:
        assert s_["k"] == s_["n"], ("unplaced", s_["n"] - s_["k"])
    return out

def f2u(x): return struct.unpack("<I", struct.pack("<f", x))[0]
def fhex(x): return hex(f2u(x))

S_X, S_WS, S_W, S_D, S_O = 36, 40, 44, 52, 56
sWV, sXC, sJ, sCP, sRB, sCS, sRT, sCT, sNONCE = 60, 61, 62, 63, 64, 65, 66, 67, 68
sOOB = 69
sT0, sT1, sT2, sT3, sT4, sT5 = 70, 71, 72, 73, 74, 75
sLDT, sDSK, sMASK = 76, 77, 78
sWL = 79
sWG = 80
sHV, sCH = 81, 82
sWLB = 83
sC1, sC2 = 84, 86
sEX = 88
sP0, sP1, sP2, sP3 = 90, 91, 92, 93
sSPIN, sSTAMP = 94, 95
sD0, sBD = 34, 35
sF0, sF1 = 3, 48
sXFO, sHFO = 51, 98
sG0, sG1 = 99, 100
sHFB = 0
sROT = 101
sWU = 4
sXU = 12
sHU = 20
sDU = 27
vLANE, vL16 = 1, 2
vDA = 22
vDB = 23
vDW = 26
vPOLL = 240
vPA = 244
vKT = 245

def srd(a, dst, src, size):
    a(f"s_mov_b32 s{dst}, s{src}")
    a(f"s_and_b32 s{dst+1}, s{src+1}, 0xffff")
    a(f"s_mov_b32 s{dst+2}, {size}")
    a(f"s_mov_b32 s{dst+3}, 0x20000")

def stamp(a, idx):
    if not OPTS.get("stamps"): return
    with a.group():
        a("s_memrealtime s[96:97]")
        a.drain_lg()
        a("v_mov_b32 v254, s96")
        if OPTS.get("stamps") == 2:
            a.vmem(f"buffer_store_dword v254, off, s[{S_D}:{S_D+3}], s{sSTAMP} offset:{4*idx}") if False else None
        a.vmem(f"buffer_store_dword v254, off, s[{S_WS}:{S_WS+3}], s{sSTAMP} offset:{4*idx}")

def cstamp(a, idx):
    if not OPTS.get("stamps"): return
    with a.group():
        a("s_memtime s[96:97]")
        a.drain_lg()
        a("v_mov_b32 v254, s96")
        a.vmem(f"buffer_store_dword v254, off, s[{S_WS}:{S_WS+3}], s{sSTAMP} offset:{4*idx}")

def dma_A(a, u):
    for i in range(4):
        a(f"s_add_u32 m0, s{sWL}, {u*SA + i*1024}")
        a(f"s_add_u32 s{sD0}, s{sWU+u}, {8*i * 3584}")
        a.vmem(f"buffer_load_dwordx4 v{vDA}, s[{S_W}:{S_W+3}], s{sD0} offen lds", f"A{u}")

def dma_B(a, u):
    for i in range(3):
        a(f"s_add_u32 m0, s{sWLB}, {B_SLOT[u] + i*1024}")
        a(f"s_add_u32 s{sD0}, s{sWU+u}, s{sBD}")
        a.vmem(f"buffer_load_dwordx4 v{vDB+i}, s[{S_W}:{S_W+3}], s{sD0} offen lds", f"B{u}")

def touch_wgu(a):
    a(f"v_lshrrev_b32 v253, 2, v{vLANE}")
    a(f"s_movk_i32 s{sT1}, 3584")
    a(f"v_mul_u32_u24 v253, s{sT1}, v253")
    a(f"v_and_b32 v254, 3, v{vLANE}")
    a(f"v_lshl_add_u32 v253, v254, 6, v253")
    a(f"s_lshr_b32 s{sT0}, s{sJ}, 3")
    a(f"s_lshl_b32 s{sT0}, s{sT0}, 7")
    a(f"s_lshl_b32 s{sT1}, s{sHV}, 6")
    a(f"s_add_u32 s{sT0}, s{sT0}, s{sT1}")
    a(f"s_mul_i32 s{sT0}, s{sT0}, 3584")
    a(f"s_mul_i32 s{sT1}, s{sCS}, 224")
    a(f"s_add_u32 s{sT0}, s{sT0}, s{sT1}")
    for i in range(4):
        a.vmem(f"buffer_load_dword v254, v253, s[{S_W}:{S_W+3}], s{sT0} offen", "touch")
        if i < 3: a(f"s_add_u32 s{sT0}, s{sT0}, {16*3584}")

def touch_wd(a):
    a(f"v_lshlrev_b32 v253, 10, v{vLANE}")
    a(f"s_lshr_b32 s{sG0}, s{sJ}, 3")
    a(f"s_mul_i32 s{sG0}, s{sG0}, 448")
    a(f"s_mul_i32 s{sG1}, s{sWV}, 112")
    a(f"s_add_u32 s{sG0}, s{sG0}, s{sG1}")
    a(f"s_lshl_b32 s{sG0}, s{sG0}, 10")
    a(f"s_lshl_b32 s{sG1}, s{sCT}, 7")
    a(f"s_add_u32 s{sG0}, s{sG0}, s{sG1}")
    a.vmem(f"buffer_load_dword v254, v253, s[{S_D}:{S_D+3}], s{sG0} offen", "touch")
    a.vmem(f"buffer_load_dword v254, v253, s[{S_D}:{S_D+3}], s{sG0} offen offset:64", "touch")
    a(f"s_add_u32 s{sG0}, s{sG0}, 65536")
    a.vmem(f"buffer_load_dword v254, v253, s[{S_D}:{S_D+3}], s{sG0} offen", "touch")
    a.vmem(f"buffer_load_dword v254, v253, s[{S_D}:{S_D+3}], s{sG0} offen offset:64", "touch")

def flag_store(a, sreg):
    with a.group():
        a(f"s_add_u32 s{sG0}, s{sreg}, s{sOOB}")
        a(f"v_mov_b32 v254, s{sG0}")
        a(f"v_mov_b32 v255, s{sNONCE}")
        a("s_mov_b64 exec, 1")
        a.vmem(f"buffer_store_dword v255, v254, s[{S_WS}:{S_WS+3}], 0 offen sc0 sc1", "flag")
        a("s_mov_b64 exec, -1")

def poll_issue(a, name, nload):
    if nload == 1:
        a.vmem(f"buffer_load_dword v{vPOLL}, v{vPA}, s[{S_WS}:{S_WS+3}], 0 offen sc0 sc1", f"poll_{name}")
    else:
        a.vmem(f"buffer_load_dwordx4 v[{vPOLL}:{vPOLL+3}], v{vPA}, s[{S_WS}:{S_WS+3}], 0 offen sc0 sc1", f"poll_{name}")

def poll_test(a, nload):
    if nload == 1:
        a(f"v_cmp_ne_u32 vcc, s{sNONCE}, v{vPOLL}")
    else:
        for i in range(4): a(f"v_xor_b32 v{vPOLL+i}, s{sNONCE}, v{vPOLL+i}")
        a(f"v_or_b32 v{vPOLL}, v{vPOLL}, v{vPOLL+1}")
        a(f"v_or3_b32 v{vPOLL}, v{vPOLL}, v{vPOLL+2}, v{vPOLL+3}")
        a(f"v_cmp_ne_u32 vcc, 0, v{vPOLL}")
    a("s_nop 4")
    a("s_cmp_eq_u64 vcc, 0")

DEFER = []

def poll_check(a, name, nload):
    with a.group():
        a.wait_vm(f"poll_{name}")
        poll_test(a, nload)
        a(f"s_cbranch_scc0 L_slow_{name}")
        a.label(f"L_ok_{name}")
    d = Asm()
    d.label(f"L_slow_{name}")
    d(f"s_mov_b32 s{sSPIN}, 0")
    d.label(f"L_spin_{name}")
    d("s_sleep 1")
    if nload == 1:
        d(f"buffer_load_dword v{vPOLL}, v{vPA}, s[{S_WS}:{S_WS+3}], 0 offen sc0 sc1")
    else:
        d(f"buffer_load_dwordx4 v[{vPOLL}:{vPOLL+3}], v{vPA}, s[{S_WS}:{S_WS+3}], 0 offen sc0 sc1")
    d("s_waitcnt vmcnt(0)")
    poll_test(d, nload)
    d(f"s_cbranch_scc1 L_ok_{name}")
    d(f"s_add_u32 s{sSPIN}, s{sSPIN}, 1")
    d(f"s_cmp_lt_u32 s{sSPIN}, 200000")
    d(f"s_cbranch_scc1 L_spin_{name}")
    d(f"s_branch L_ok_{name}")
    DEFER.extend(d.L)

def cmul(a, d, x, y, t):
    a(f"v_pk_mul_f32 v[{t}:{t+1}], v[{x}:{x+1}], v[{y}:{y+1}] op_sel:[0,0] op_sel_hi:[1,0]")
    a(f"v_pk_fma_f32 v[{d}:{d+1}], v[{x}:{x+1}], v[{y}:{y+1}], v[{t}:{t+1}] op_sel:[1,1,0] op_sel_hi:[0,1,1] neg_lo:[1,0,0]")

def prologue(a):
    a("s_cmp_ge_u32 s2, 256")
    a("s_cbranch_scc1 L_end")
    a("s_load_dwordx16 s[4:19], s[0:1], 0")
    a("v_lshrrev_b32 v5, 5, v0")
    a("v_and_b32 v6, 31, v0")
    a("v_lshlrev_b32 v7, 10, v5")
    a("v_lshl_add_u32 v7, v6, 4, v7")
    a(f"s_lshl_b32 s{sT2}, s2, 13")
    a(f"s_mov_b32 s{S_X+2}, 2097152")
    a(f"s_mov_b32 s{S_X+3}, 0x20000")
    if OPTS.get("codewarm"):
        nk = OPTS["codewarm"]
        a("s_getpc_b64 s[96:97]")
        a("s_lshr_b32 s3, s2, 3")
        a(f"s_min_u32 s3, s3, {nk - 1}")
        a("s_lshl_b32 s3, s3, 10")
        a("s_add_u32 s96, s96, s3")
        a("s_addc_u32 s97, s97, 0")
        a("v_lshlrev_b32 v254, 2, v0")
        a("v_mov_b32 v255, s97")
        a("v_add_co_u32 v254, vcc, s96, v254")
    a("s_load_dwordx4 s[20:23], s[0:1], 64")
    a("s_load_dwordx8 s[24:31], s[0:1], 80")
    if OPTS.get("codewarm"):
        a("v_addc_co_u32 v255, vcc, 0, v255, vcc")
        a.vmem("global_load_dword v111, v[254:255], off", "cw")
    a("s_load_dwordx2 s[32:33], s[0:1], 120")
    if OPTS.get("spin"):
        a("s_memrealtime s[96:97]")
        a("s_waitcnt lgkmcnt(0)")
        a("s_mov_b32 s35, s96")
    a(f"v_lshrrev_b32 v2, 6, v0")
    a(f"v_and_b32 v{vLANE}, 63, v0")
    a(f"v_readfirstlane_b32 s{sWV}, v2")
    a("s_waitcnt lgkmcnt(0)")
    a(f"s_mov_b32 s{S_X}, s4")
    a(f"s_and_b32 s{S_X+1}, s5, 0xffff")
    a.vmem(f"buffer_load_dwordx4 v[8:11], v7, s[{S_X}:{S_X+3}], s{sT2} offen", "x")
    a.vmem(f"buffer_load_dwordx4 v[12:15], v7, s[{S_X}:{S_X+3}], s{sT2} offen offset:512", "x")
    a(f"s_and_b32 s{sXC}, s2, 7")
    a(f"s_lshr_b32 s{sJ}, s2, 3")
    a(f"s_lshl_b32 s{sT0}, s{sXC}, 5")
    a(f"s_add_u32 s{sCP}, s{sT0}, s{sJ}")
    a(f"s_and_b32 s{sCT}, s{sJ}, 7")
    if OPTS.get("tile84"):
        a(f"s_lshr_b32 s{sT0}, s{sXC}, 2")
        a(f"s_lshl_b32 s{sT0}, s{sT0}, 3")
        a(f"s_lshr_b32 s{sT1}, s{sJ}, 2")
        a(f"s_add_u32 s{sRB}, s{sT0}, s{sT1}")
        a(f"s_and_b32 s{sT0}, s{sXC}, 3")
        a(f"s_lshl_b32 s{sT0}, s{sT0}, 2")
        a(f"s_and_b32 s{sT1}, s{sJ}, 3")
        a(f"s_add_u32 s{sCS}, s{sT0}, s{sT1}")
        a(f"s_lshr_b32 s{sT1}, s{sJ}, 3")
    else:
        a(f"s_lshr_b32 s{sT0}, s{sXC}, 1")
        a(f"s_lshl_b32 s{sT0}, s{sT0}, 2")
        a(f"s_lshr_b32 s{sT1}, s{sJ}, 3")
        a(f"s_add_u32 s{sRB}, s{sT0}, s{sT1}")
        a(f"s_and_b32 s{sT0}, s{sXC}, 1")
        a(f"s_lshl_b32 s{sT0}, s{sT0}, 3")
        a(f"s_add_u32 s{sCS}, s{sT0}, s{sCT}")
    a(f"s_lshl_b32 s{sT0}, s{sXC}, 2")
    a(f"s_add_u32 s{sRT}, s{sT0}, s{sT1}")
    a(f"s_and_b32 s{sHV}, s{sWV}, 1")
    a(f"s_lshr_b32 s{sCH}, s{sWV}, 1")
    a(f"s_mov_b32 s{sMASK}, 0xffff0000")
    a(f"v_lshlrev_b32 v{vL16}, 4, v{vLANE}")
    srd(a, S_WS, 32, WS_SIZE)
    a("v_mov_b32 v3, 0")
    a.vmem(f"buffer_load_dword v4, v3, s[{S_WS}:{S_WS+3}], 0 offen sc0 sc1", "epoch")
    a(f"s_lshl_b32 s{sT0}, s{sCP}, 1")
    a(f"s_add_u32 s{sT0}, s{sT0}, s{sCH}")
    a(f"s_lshl_b32 s{sT0}, s{sT0}, 8")
    a(f"s_lshl_b32 s{sT1}, s{sHV}, 7")
    a(f"s_add_u32 s{sT0}, s{sT0}, s{sT1}")
    a(f"v_lshl_add_u32 v6, v{vLANE}, 1, s{sT0}")
    for i in range(6):
        a.vmem(f"global_load_ushort v{16+i}, v6, s[{6+2*i}:{7+2*i}]", "par")
    a(f"s_lshl_b32 s{sT0}, s{sCP}, 2")
    a(f"s_load_dword s{sLDT}, s[18:19], s{sT0}")
    a(f"s_load_dword s{sDSK}, s[20:21], s{sT0}")
    a(f"s_cmp_ge_u32 s{sWV}, 2")
    a(f"s_cselect_b32 s{S_W}, s26, s24")
    a(f"s_cselect_b32 s{S_W+1}, s27, s25")
    a(f"s_and_b32 s{S_W+1}, s{S_W+1}, 0xffff")
    a(f"s_mov_b32 s{S_W+2}, 1835008")
    a(f"s_mov_b32 s{S_W+3}, 0x20000")
    srd(a, S_D, 28, 1835008)
    srd(a, S_O, 30, 2097152)
    if OPTS.get("tlbwarm"):
        a(f"v_min_u32 v110, 8, v{vLANE}")
        a(f"v_lshlrev_b32 v110, 21, v110")
        a(f"v_add_u32 v110, 0x8000, v110")
        a("s_mov_b64 exec, 0x1ff")
        a.vmem(f"buffer_load_dword v109, v110, s[{S_WS}:{S_WS+3}], 0 offen", "tw")
        a("s_mov_b64 exec, 1")
        a.vmem(f"buffer_load_dword v108, off, s[{S_O}:{S_O+3}], 0", "tw")
        a.vmem(f"buffer_load_dword v107, off, s[{S_D}:{S_D+3}], 0", "tw")
        a("s_mov_b64 exec, -1")
    a(f"s_cmp_eq_u32 s{sWV}, 0")
    a(f"s_cselect_b32 s{sOOB}, 0, 0x7ff00000")
    if OPTS.get("stamps"):
        a(f"s_lshl_b32 s{sSTAMP}, s2, 2")
        a(f"s_add_u32 s{sSTAMP}, s{sSTAMP}, s{sWV}")
        a(f"s_lshl_b32 s{sSTAMP}, s{sSTAMP}, 7")
        a(f"s_add_u32 s{sSTAMP}, s{sSTAMP}, {WS_STAMP}")
    stamp(a, 0); cstamp(a, 16)
    a(f"v_lshrrev_b32 v4, 3, v{vLANE}") if False else None
    a(f"v_lshrrev_b32 v27, 3, v{vLANE}")
    a(f"v_and_b32 v28, 7, v{vLANE}")
    a(f"v_bfe_u32 v29, v27, 1, 1")
    a(f"v_lshlrev_b32 v29, 2, v29")
    a(f"v_xor_b32 v30, v28, v29")
    a(f"v_lshlrev_b32 v31, 10, v27")
    a(f"v_lshl_add_u32 v{vDW}, v30, 4, v31")
    a(f"s_lshl_b32 s{sT0}, s{sCH}, 1")
    a(f"v_xor_b32 v30, s{sT0}, v30")
    a(f"s_movk_i32 s{sT1}, 3584")
    a(f"v_mul_u32_u24 v31, s{sT1}, v27")
    a(f"v_lshl_add_u32 v{vDA}, v30, 4, v31")
    a(f"s_lshl_b32 s{sWL}, s{sCH}, 13")
    a(f"s_lshl_b32 s{sT0}, s{sHV}, 12")
    a(f"s_add_u32 s{sWL}, s{sWL}, s{sT0}")
    a(f"s_mul_i32 s{sWG}, s{sHV}, {32*3584}")
    a(f"s_lshl_b32 s{sT0}, s{sCS}, 7")
    a(f"s_add_u32 s{sWG}, s{sWG}, s{sT0}")
    a(f"s_lshl_b32 s{sT0}, s{sCS}, 5")
    a(f"s_sub_u32 s{sBD}, 2048, s{sT0}")
    if OPTS.get("tile84"):
        a(f"s_and_b32 s{sT0}, s{sJ}, 3")
        a(f"s_lshl_b32 s{sT0}, s{sT0}, 1")
        a(f"s_lshr_b32 s{sT1}, s{sJ}, 2")
        a(f"s_add_u32 s{sT1}, s{sT1}, s{sT0}")
    else:
        a(f"s_lshr_b32 s{sT0}, s{sJ}, 3")
        a(f"s_lshl_b32 s{sT1}, s{sT0}, 1")
        a(f"s_add_u32 s{sT1}, s{sT1}, s{sCT}")
    a(f"s_mov_b32 s{sROT}, s{sT1}")
    if OPTS.get("norot"): a(f"s_mov_b32 s{sROT}, 0")
    for u in range(1):
        a(f"s_add_u32 s{sT2}, s{sROT}, {u}")
        a(f"s_and_b32 s{sT2}, s{sT2}, 7")
        a(f"s_mul_i32 s{sT2}, s{sT2}, {64*3584}")
        a(f"s_add_u32 s{sWU+u}, s{sT2}, s{sWG}")
        if u == 0: dma_A(a, 0)
    if OPTS.get("touchg"): touch_wgu(a)
    r = Rec(); prologue_tail(r)
    d = Rec()
    if OPTS.get("dmaearly", 0):
        for u in range(1, 1 + OPTS["dmaearly"]): dma_A(d, u)
    play(a, weave(r.atoms, (d.atoms, 2, len(r.atoms) - 2)))

def prologue_tail(a):
    a(f"s_movk_i32 s{sT2}, 10923")
    a(f"s_movk_i32 s{sT3}, 3488")
    for i in range(3):
        a(f"v_add_u32 v27, {64*i}, v{vLANE}")
        a(f"v_mul_u32_u24 v28, s{sT2}, v27")
        a(f"v_lshrrev_b32 v28, 16, v28")
        a(f"v_lshlrev_b32 v27, 4, v27")
        a(f"v_mad_u32_u24 v{vDB+i}, v28, s{sT3}, v27")
    a(f"s_mul_i32 s{sWLB}, s{sCH}, {B_U}")
    a(f"s_mul_i32 s{sT0}, s{sHV}, 3072")
    a(f"s_add_u32 s{sWLB}, s{sWLB}, s{sT0}")
    a(f"s_lshl_b32 s{sT0}, s{sRB}, 2")
    a(f"s_add_u32 s{sT0}, s{sT0}, s{sWV}")
    a(f"s_lshl_b32 s{sXFO}, s{sT0}, 15")
    a(f"s_add_u32 s{sXFO}, s{sXFO}, {WS_XF}")
    a(f"s_mul_i32 s{sHFO}, s{sT0}, {112*1024}")
    a(f"s_add_u32 s{sHFO}, s{sHFO}, {WS_HF}")
    a(f"s_mul_i32 s{sT1}, s{sCS}, {3*1024}")
    a(f"s_add_u32 s{sHFB}, s{sHFO}, s{sT1}")
    a(f"s_add_u32 s{sHFB}, s{sHFB}, {(64 - 4)*1024}")
    a(f"s_lshl_b32 s{sT1}, s{sCS}, 12")
    a(f"s_add_u32 s{sHFO}, s{sHFO}, s{sT1}")
    ln_addr(a)

def late_tables(a):
    for u in range(1, 8):
        a(f"s_add_u32 s{sT2}, s{sROT}, {u}")
        a(f"s_and_b32 s{sT2}, s{sT2}, 7")
        a(f"s_mul_i32 s{sT2}, s{sT2}, {64*3584}")
        a(f"s_add_u32 s{sWU+u}, s{sT2}, s{sWG}")
    for u in range(8):
        a(f"s_add_u32 s{sT2}, s{sROT}, {u}")
        a(f"s_and_b32 s{sT2}, s{sT2}, 7")
        a(f"s_lshl_b32 s{sT2}, s{sT2}, 12")
        a(f"s_add_u32 s{sXU+u}, s{sT2}, s{sXFO}")
    a(f"s_mul_i32 s{sT3}, s{sRT}, {2*112*1024}")
    a(f"s_add_u32 s{sT3}, s{sT3}, {WS_HF}")
    a(f"s_mul_i32 s{sG1}, s{sCT}, {112*2048}")
    a(f"s_add_u32 s{sG1}, s{sG1}, {WS_WDT}")
    a(f"s_lshr_b32 s{sT1}, s{sJ}, 3")
    a(f"s_add_u32 s{sT1}, s{sT1}, s{sCT}")
    if OPTS.get("norot"): a(f"s_mov_b32 s{sT1}, 0")
    for g in range(4):
        a(f"s_add_u32 s{sT2}, s{sT1}, {g}")
        a(f"s_and_b32 s{sT2}, s{sT2}, 3")
        a(f"s_lshl_b32 s{sT2}, s{sT2}, 2")
        a(f"s_lshl_b32 s{sT0}, s{sWV}, 4")
        a(f"s_add_u32 s{sT2}, s{sT2}, s{sT0}")
        a(f"s_lshl_b32 s{sT0}, s{sT2}, 10")
        a(f"s_add_u32 s{sHU+g}, s{sT0}, s{sT3}")
        a(f"s_lshl_b32 s{sT0}, s{sT2}, 11")
        a(f"s_add_u32 s{sDU+g}, s{sT0}, s{sG1}")
    for g in range(3):
        a(f"s_add_u32 s{sT2}, s{sT1}, {g}")
        a(f"s_mul_i32 s{sT0}, s{sT2}, 43")
        a(f"s_lshr_b32 s{sT0}, s{sT0}, 7")
        a(f"s_mul_i32 s{sT0}, s{sT0}, 3")
        a(f"s_sub_u32 s{sT2}, s{sT2}, s{sT0}")
        a(f"s_lshl_b32 s{sT2}, s{sT2}, 2")
        a(f"s_mul_i32 s{sT0}, s{sWV}, 12")
        a(f"s_add_u32 s{sT2}, s{sT2}, s{sT0}")
        a(f"s_add_u32 s{sT2}, s{sT2}, 64")
        a(f"s_lshl_b32 s{sT0}, s{sT2}, 10")
        a(f"s_add_u32 s{sHU+4+g}, s{sT0}, s{sT3}")
        a(f"s_lshl_b32 s{sT0}, s{sT2}, 11")
        a(f"s_add_u32 s{sDU+4+g}, s{sT0}, s{sG1}")

def kt_addr(a):
    b, q = 112, 113
    a(f"v_and_b32 v{b}, 15, v{vLANE}")
    a(f"v_lshrrev_b32 v{q}, 4, v{vLANE}")
    a(f"s_mul_i32 s{sT2}, s{sCH}, {KT_CH}")
    a(f"s_add_u32 s{sT2}, s{sT2}, {L_KT + 16}")
    B0, S1, S2, B1, S3, S4, t0, t1, t2, t3 = 114, 115, 116, 117, 118, 119, 120, 121, 122, 123
    with a.group():
        a(f"s_cmp_eq_u32 s{sHV}, 0")
        a("s_cbranch_scc0 L_kt_hv1")
        a(f"v_and_b32 v{t0}, 1, v{q}")
        a(f"v_lshlrev_b32 v{t0}, 2, v{t0}")
        a(f"v_lshrrev_b32 v{t1}, 1, v{q}")
        a(f"v_lshl_add_u32 v{t0}, v{t1}, 7, v{t0}")
        a(f"v_lshl_add_u32 v{B0}, v{b}, 3, v{t0}")
        a(f"v_mov_b32 v{S1}, 1")
        a(f"v_mov_b32 v{S2}, 2")
        a(f"v_mov_b32 v{B1}, v{B0}")
        a(f"v_mov_b32 v{S3}, 1")
        a(f"v_mov_b32 v{S4}, 2")
        a("s_branch L_kt_done")
        a.label("L_kt_hv1")
        a(f"v_cmp_gt_u32 vcc, 2, v{q}")
        a(f"v_lshlrev_b32 v{t0}, 6, v{q}")
        a(f"v_lshlrev_b32 v{t1}, 1, v{b}")
        a(f"v_lshlrev_b32 v{t2}, 2, v{b}")
        a(f"v_cndmask_b32 v{t1}, v{t1}, v{t2}, vcc")
        a(f"v_add_u32 v{B0}, v{t0}, v{t1}")
        a(f"v_add_u32 v{B0}, 0x100, v{B0}")
        a(f"v_mov_b32 v{S1}, 1")
        a(f"v_mov_b32 v{S2}, 32")
        a(f"v_mov_b32 v{t2}, 2")
        a(f"v_cndmask_b32 v{S2}, v{S2}, v{t2}, vcc")
        a(f"v_add_u32 v{B1}, v{t0}, v{b}")
        a(f"v_add_u32 v{B1}, 0x200, v{B1}")
        a(f"v_mov_b32 v{S3}, 16")
        a(f"v_mov_b32 v{S4}, 16")
        a(f"v_mov_b32 v{t2}, 32")
        a(f"v_cndmask_b32 v{S4}, v{S4}, v{t2}, vcc")
        a(f"v_cmp_eq_u32 vcc, 3, v{q}")
        a(f"v_add_u32 v{t2}, 0x290, v{b}")
        a(f"v_mov_b32 v{t3}, 0")
        a(f"v_cndmask_b32 v{B1}, v{B1}, v{t2}, vcc")
        a(f"v_cndmask_b32 v{S3}, v{S3}, v{t3}, vcc")
        a(f"v_cndmask_b32 v{S4}, v{S4}, v{t3}, vcc")
        a.label("L_kt_done")
    for t, (B, Sa, Sb) in enumerate(((B0, S1, S2), (B1, S3, S4))):
        o = vKT + 4*t
        a(f"v_lshl_add_u32 v{o}, v{B}, 1, s{sT2}")
        a(f"v_lshl_add_u32 v{o+1}, v{Sa}, 1, v{o}")
        a(f"v_lshl_add_u32 v{o+2}, v{Sb}, 1, v{o}")
        a(f"v_lshl_add_u32 v{o+3}, v{Sb}, 1, v{o+1}")

vLW, vLXF, vGXF, vLXT = 64, 65, 66, 67
def ln_addr(a):
    a(f"v_lshrrev_b32 v68, 5, v{vLANE}")
    a(f"s_lshl_b32 s{sT0}, s{sWV}, 1")
    a(f"v_add_u32 v68, s{sT0}, v68")
    a(f"v_mul_u32_u24 v68, {LNX_ROW}, v68")
    a(f"v_and_b32 v69, 31, v{vLANE}")
    a(f"v_lshl_add_u32 v68, v69, 4, v68")
    a(f"v_add_u32 v{vLW}, {L_LNX}, v68")
    a("v_and_b32 v68, 7, v0")
    a("v_lshrrev_b32 v69, 3, v0")
    a(f"v_mul_u32_u24 v70, {LNX_ROW}, v68")
    a("v_lshl_add_u32 v70, v69, 4, v70")
    a(f"v_add_u32 v{vLXF}, {L_LNX}, v70")
    a("v_lshrrev_b32 v70, 1, v69")
    a("v_lshlrev_b32 v70, 10, v70")
    a("v_and_b32 v71, 1, v69")
    a("v_lshl_add_u32 v70, v71, 9, v70")
    a(f"v_lshl_add_u32 v{vGXF}, v68, 4, v70")
    a(f"s_lshr_b32 s{sP0}, s2, 2")
    a(f"s_lshl_b32 s{sP0}, s{sP0}, 15")
    a(f"s_and_b32 s{sT1}, s2, 3")
    a(f"s_lshl_b32 s{sT1}, s{sT1}, 7")
    a(f"s_add_u32 s{sP0}, s{sP0}, s{sT1}")
    a(f"s_add_u32 s{sP0}, s{sP0}, {WS_XF}")
    a(f"s_add_u32 s{sP1}, s{sP0}, 16384")
    a(f"v_bfe_u32 v68, v{vLANE}, 2, 2")
    a(f"v_mul_u32_u24 v68, {LNX_ROW}, v68")
    a(f"v_lshrrev_b32 v69, 4, v{vLANE}")
    a(f"v_lshl_add_u32 v68, v69, 5, v68")
    a(f"v_and_b32 v69, 3, v{vLANE}")
    a(f"v_lshl_add_u32 v68, v69, 3, v68")
    a(f"s_lshl_b32 s{sT2}, s{sWV}, 8")
    a(f"s_add_u32 s{sT2}, s{sT2}, {L_LNX}")
    a(f"v_add_u32 v{vLXT}, s{sT2}, v68")
    a(f"s_lshl_b32 s{sP2}, s2, 13")
    a(f"s_lshl_b32 s{sT3}, s{sWV}, 11")
    a(f"s_add_u32 s{sP2}, s{sP2}, s{sT3}")
    a(f"s_add_u32 s{sP2}, s{sP2}, {WS_XT}")
    a(f"s_lshr_b32 s{sP3}, s2, 4")
    a(f"s_lshl_b32 s{sP3}, s{sP3}, 8")
    a(f"s_and_b32 s{sT2}, s2, 15")
    a(f"s_lshl_b32 s{sT2}, s{sT2}, 2")
    a(f"s_add_u32 s{sP3}, s{sP3}, s{sT2}")
    a(f"s_add_u32 s{sP3}, s{sP3}, {WS_F1}")

def reduce32(a, regs, tmps):
    for ctrl in ("quad_perm:[1,0,3,2]", "quad_perm:[2,3,0,1]", "row_half_mirror", "row_mirror"):
        a("s_nop 0" if len(regs) > 1 else "s_nop 1")
        for r in regs:
            a(f"v_add_f32_dpp v{r}, v{r}, v{r} {ctrl} row_mask:0xf bank_mask:0xf")
    for r, t in zip(regs, tmps): a(f"v_mov_b32 v{t}, v{r}")
    a("s_nop 1")
    for r, t in zip(regs, tmps): a(f"v_permlane16_swap_b32 v{r}, v{t}")
    a("s_nop 1")
    for r, t in zip(regs, tmps): a(f"v_add_f32 v{r}, v{r}, v{t}")

def layernorm(a):
    a.cm("==== layernorm: lanes 0-31 row 8w+2v, lanes 32-63 the next row ====")
    a.wait_vm("epoch")
    stamp(a, 1)
    X, Dv = 32, 48
    for u in range(1, 1 + OPTS.get("lnA", 0)):
        a(f"s_add_u32 s{sT2}, s{sROT}, {u}")
        a(f"s_and_b32 s{sT2}, s{sT2}, 7")
        a(f"s_mul_i32 s{sT2}, s{sT2}, {64*3584}")
        a(f"s_add_u32 s{sWU+u}, s{sT2}, s{sWG}")
        dma_A(a, u)
    a(f"v_readfirstlane_b32 s{sNONCE}, v4")
    for k in range(8):
        a(f"v_lshlrev_b32 v{X+2*k}, 16, v{8+k}")
        a(f"v_and_b32 v{X+2*k+1}, s{sMASK}, v{8+k}")
    a(f"s_mul_i32 s{sNONCE}, s{sNONCE}, 1664525")
    a(f"s_add_u32 s{sNONCE}, s{sNONCE}, 1013904223")
    T, Q = 72, 76
    S, V = 70, 69
    a(f"v_pk_add_f32 v[{T}:{T+1}], v[{X}:{X+1}], v[{X+2}:{X+3}]")
    a(f"v_pk_mul_f32 v[{Q}:{Q+1}], v[{X}:{X+1}], v[{X}:{X+1}]")
    a(f"v_pk_add_f32 v[{T+2}:{T+3}], v[{X+4}:{X+5}], v[{X+6}:{X+7}]")
    a(f"v_pk_mul_f32 v[{Q+2}:{Q+3}], v[{X+2}:{X+3}], v[{X+2}:{X+3}]")
    for k in range(2, 8, 2):
        if k >= 4:
            a(f"v_pk_add_f32 v[{T}:{T+1}], v[{T}:{T+1}], v[{X+2*k}:{X+2*k+1}]")
            a(f"v_pk_add_f32 v[{T+2}:{T+3}], v[{T+2}:{T+3}], v[{X+2*k+2}:{X+2*k+3}]")
        a(f"v_pk_fma_f32 v[{Q}:{Q+1}], v[{X+2*k}:{X+2*k+1}], v[{X+2*k}:{X+2*k+1}], v[{Q}:{Q+1}]")
        a(f"v_pk_fma_f32 v[{Q+2}:{Q+3}], v[{X+2*k+2}:{X+2*k+3}], v[{X+2*k+2}:{X+2*k+3}], v[{Q+2}:{Q+3}]")
    a(f"v_pk_add_f32 v[{T}:{T+1}], v[{T}:{T+1}], v[{T+2}:{T+3}]")
    a(f"v_pk_add_f32 v[{Q}:{Q+1}], v[{Q}:{Q+1}], v[{Q+2}:{Q+3}]")
    a(f"v_add_f32 v{S}, v{T}, v{T+1}")
    a(f"v_add_f32 v{V}, v{Q}, v{Q+1}")
    reduce32(a, [S, V], [T, T+1])
    a(f"v_mul_f32 v{S}, {fhex(1/512)}, v{S}")
    a(f"v_mul_f32 v{V}, {fhex(1/512)}, v{V}")
    a(f"v_fma_f32 v{V}, -v{S}, v{S}, v{V}")
    a(f"v_max_f32 v{V}, 0, v{V}")
    a(f"v_cvt_pk_bf16_f32 v{T}, v{S}, v{V}")
    a(f"v_lshlrev_b32 v{S}, 16, v{T}")
    a(f"v_and_b32 v{V}, s{sMASK}, v{T}")
    a(f"v_add_f32 v{V}, {fhex(1e-5)}, v{V}")
    a(f"v_cvt_pk_bf16_f32 v{V}, v{V}, v{V}")
    a(f"v_lshlrev_b32 v{V}, 16, v{V}")
    a(f"v_sqrt_f32 v{V}, v{V}")
    for k in range(8):
        a(f"v_pk_add_f32 v[{Dv+2*k}:{Dv+2*k+1}], v[{X+2*k}:{X+2*k+1}], v[{S}:{S+1}] op_sel_hi:[1,0] neg_lo:[0,1] neg_hi:[0,1]")
        if k == 0:
            a(f"v_cvt_pk_bf16_f32 v{T+2}, v{V}, v{V}")
        if k == 1:
            a(f"v_lshlrev_b32 v{T+2}, 16, v{T+2}")
        if k == 2:
            a(f"v_rcp_f32 v{T}, v{T+2}")
    for k in range(8):
        a(f"v_cvt_pk_bf16_f32 v{X+k}, v{Dv+2*k}, v{Dv+2*k+1}")
    for k in range(8):
        a(f"v_lshlrev_b32 v{Dv+2*k}, 16, v{X+k}")
        a(f"v_and_b32 v{Dv+2*k+1}, s{sMASK}, v{X+k}")
    for k in range(8):
        a(f"v_pk_mul_f32 v[{Dv+2*k}:{Dv+2*k+1}], v[{Dv+2*k}:{Dv+2*k+1}], v[{T}:{T+1}] op_sel_hi:[1,0]")
    for k in range(8):
        a(f"v_cvt_pk_bf16_f32 v{X+k}, v{Dv+2*k}, v{Dv+2*k+1}")
    a.lds(f"ds_write_b128 v{vLW}, v[32:35]")
    a.lds(f"ds_write_b128 v{vLW}, v[36:39] offset:512")
    a.drain_lg()
    a("s_barrier")
    a.lds(f"ds_read_b128 v[32:35], v{vLXF}", "xf0")
    a.lds(f"ds_read_b128 v[36:39], v{vLXF} offset:512", "xf1")
    a.lds(f"ds_read_b64_tr_b16 v[40:41], v{vLXT}", "xt0")
    a.lds(f"ds_read_b64_tr_b16 v[42:43], v{vLXT} offset:{4*LNX_ROW}", "xt0")
    a.lds(f"ds_read_b64_tr_b16 v[44:45], v{vLXT} offset:128", "xt1")
    a.lds(f"ds_read_b64_tr_b16 v[46:47], v{vLXT} offset:{4*LNX_ROW + 128}", "xt1")
    a.wait_lg("xf0")
    a.vmem(f"buffer_store_dwordx4 v[32:35], v{vGXF}, s[{S_WS}:{S_WS+3}], s{sP0} offen sc0 sc1", "lnst")
    a.wait_lg("xf1")
    a.vmem(f"buffer_store_dwordx4 v[36:39], v{vGXF}, s[{S_WS}:{S_WS+3}], s{sP1} offen sc0 sc1", "lnst")
    a.wait_lg("xt0")
    a.vmem(f"buffer_store_dwordx4 v[40:43], v{vL16}, s[{S_WS}:{S_WS+3}], s{sP2} offen sc0 sc1", "lnst")
    a.wait_lg("xt1")
    a.vmem(f"buffer_store_dwordx4 v[44:47], v{vL16}, s[{S_WS}:{S_WS+3}], s{sP2} offen offset:1024 sc0 sc1", "lnst")
    stamp(a, 2)

def direct_exp(a, d, l, A2, F, t):
    a(f"v_mul_f32 v{t}, {fhex(float(l))}, v{A2}")
    a(f"v_mul_f32 v{t+1}, {fhex(float(l))}, v{F}")
    a(f"v_exp_f32 v{t}, v{t}")
    a(f"v_fract_f32 v{t+1}, v{t+1}")
    a(f"v_cos_f32 v{t+2}, v{t+1}")
    a(f"v_sin_f32 v{t+3}, v{t+1}")
    a("s_nop 0")
    a(f"v_mul_f32 v{d}, v{t}, v{t+2}")
    a(f"v_mul_f32 v{d+1}, v{t}, v{t+3}")

def kgen_chains(a):
    a.wait_vm("par")
    for i in range(6):
        a(f"v_lshlrev_b32 v{16+i}, 16, v{16+i}")
    a(f"s_lshl_b32 s{sF0}, s{sLDT}, 16")
    a(f"s_and_b32 s{sF1}, s{sLDT}, s{sMASK}")
    with a.group():
        a(f"s_cmp_eq_u32 s{sCH}, 0")
        a(f"s_cselect_b32 s{sF0}, s{sF0}, s{sF1}")
    a(f"v_mov_b32 v48, s{sF0}")
    a(f"v_mul_f32 v48, {fhex(math.log2(math.e))}, v48")
    a("v_exp_f32 v48, v48")
    a("s_nop 0")
    a("v_cvt_pk_bf16_f32 v48, v48, v48")
    a("v_lshlrev_b32 v48, 16, v48")
    A2, F = 50, 51
    a(f"v_mul_f32 v{A2}, v48, v16")
    a(f"v_mul_f32 v{F}, v48, v17")
    a(f"v_mul_f32 v{A2}, {fhex(math.log2(math.e))}, v{A2}")
    a(f"v_mul_f32 v{F}, {fhex(1/(2*math.pi))}, v{F}")
    a("v_mul_f32 v52, v48, v18")
    a("v_mul_f32 v53, v48, v19")
    E1, E8, E128, W = 54, 56, 58, 60
    cmul(a, W, 20, 52, 62)
    direct_exp(a, E1, 1, A2, F, 62)
    direct_exp(a, E8, 8, A2, F, 66)
    direct_exp(a, E128, 128, A2, F, 62)
    E2, E4, E256, E512, E1024, Q1 = 70, 72, 74, 76, 78, 80
    cmul(a, E2, E1, E1, 62)
    cmul(a, E256, E128, E128, 64)
    a(f"v_mov_b32 v{Q1}, v{E8}")
    a(f"v_xor_b32 v{Q1+1}, 0x80000000, v{E8+1}")
    cmul(a, E4, E2, E2, 62)
    cmul(a, E512, E256, E256, 64)
    cmul(a, E1024, E512, E512, 62)
    a(f"s_mul_i32 s{sF0}, s{sCH}, {PT_CH}")
    a(f"s_lshl_b32 s{sF1}, s{sHV}, 8")
    a(f"s_add_u32 s{sF0}, s{sF0}, s{sF1}")
    a(f"s_add_u32 s{sF0}, s{sF0}, {L_PT}")
    vAD = 82
    a(f"v_lshl_add_u32 v{vAD}, v{vLANE}, 2, s{sF0}")
    cv = [84, 85, 86, 87]; cvi = [0]
    def emit(row, pair):
        c = cv[cvi[0] % 4]; cvi[0] += 1
        a(f"v_cvt_pk_bf16_f32 v{c}, v{pair}, v{pair+1}")
        a.lds(f"ds_write_b32 v{vAD}, v{c} offset:{row*PT_ROW}")
    a("v_mov_b32 v83, 0x3f80")
    a.lds(f"ds_write_b32 v{vAD}, v83 offset:{41*PT_ROW}")
    emit(42, Q1)
    PA, PB, PH = 88, 90, 92
    QA, QB = 94, 96
    tq, tp = 98, 100
    emit(0, W)
    cmul(a, PH, W, E128, tp); emit(8, PH)
    curP, curQ = W, Q1
    for r in range(1, 8):
        nP = PA if r % 2 else PB
        nQ = QA if r % 2 else QB
        cmul(a, nP, curP, E1, tp)
        cmul(a, nQ, curQ, Q1, tq)
        emit(r, nP)
        emit(41 + 1 + r, nQ)
        cmul(a, PH, nP, E128, tp)
        emit(8 + r, PH)
        curP, curQ = nP, nQ
    st = {"q": curQ}
    def qstep(b):
        nQ = QA if st["q"] != QA else QB
        cmul(a, nQ, st["q"], Q1, tq); emit(41 + b, nQ); st["q"] = nQ
    U0, U1 = 88, 90
    cmul(a, U0, W, E256, tp)
    qstep(9)
    emit(16, U0); cmul(a, PH, U0, E128, tp); emit(20, PH)
    cur = U0
    for r in range(1, 4):
        nx = U1 if cur == U0 else U0
        cmul(a, nx, cur, E2, tp)
        qstep(9 + r)
        emit(16 + r, nx); cmul(a, PH, nx, E128, tp); emit(20 + r, PH)
        cur = nx
    V0, V1 = 102, 104
    cmul(a, V0, W, E512, tp)
    qstep(13)
    cmul(a, V1, V0, E4, tp)
    emit(24, V0); emit(25, V1)
    for u in range(1, 4):
        cmul(a, V0, V0, E128, tp)
        cmul(a, V1, V1, E128, tq)
        emit(24 + 2*u, V0); emit(25 + 2*u, V1)
    X0 = 106
    cmul(a, X0, W, E1024, tp)
    qstep(14)
    emit(32, X0)
    cmul(a, X0, X0, E128, tp)
    qstep(15)
    emit(33, X0)
    for r in range(2, 9):
        cmul(a, X0, X0, E128, tp)
        emit(32 + r, X0)
    a(f"s_mul_i32 s{sF0}, s{sCH}, {KT_CH}")
    a(f"s_add_u32 s{sF0}, s{sF0}, {L_KT}")
    for i in range(4): a(f"v_mov_b32 v{108+i}, 0")
    a(f"v_mov_b32 v112, s{sF0}")
    a.lds("ds_write_b128 v112, v[108:111]")

def kgen_mfma_stage(a, part=None):
    if part != 1: kgen_stage0(a)
    if part != 0: kgen_stage1(a)

def kgen_stage0(a):
    a(f"v_and_b32 v64, 15, v{vLANE}")
    a(f"v_lshrrev_b32 v65, 4, v{vLANE}")
    a(f"v_mul_u32_u24 v66, {PT_ROW}, v64")
    a(f"v_lshl_add_u32 v66, v65, 4, v66")
    a(f"s_mul_i32 s{sT0}, s{sCH}, {PT_CH}")
    a(f"s_add_u32 s{sT0}, s{sT0}, {L_PT}")
    a(f"v_add_u32 v66, s{sT0}, v66")
    a(f"s_mul_i32 s{sT0}, s{sHV}, {16*PT_ROW}")
    a(f"v_add_u32 v67, s{sT0}, v66")
    a(f"s_lshl_b32 s{sT0}, s{sT0}, 1")
    a(f"v_add_u32 v68, s{sT0}, v66")
    a.drain_lg()
    a("s_barrier")
    FA, FB, FQ = 96, 128, 160
    def mf(g):
        a.wait_lg(f"q{g}")
        ca = "0" if g == 0 else "v[192:195]"
        cb = "0" if g == 0 else "v[196:199]"
        a(f"v_mfma_f32_16x16x32_bf16 v[192:195], v[{FA+4*g}:{FA+4*g+3}], v[{FQ+4*g}:{FQ+4*g+3}], {ca}")
        a(f"v_mfma_f32_16x16x32_bf16 v[196:199], v[{FB+4*g}:{FB+4*g+3}], v[{FQ+4*g}:{FQ+4*g+3}], {cb}")
    for g in range(8):
        a.lds(f"ds_read_b128 v[{FQ+4*g}:{FQ+4*g+3}], v66 offset:{41*PT_ROW + 64*g}", f"q{g}")
        a.lds(f"ds_read_b128 v[{FA+4*g}:{FA+4*g+3}], v67 offset:{64*g}", f"q{g}")
        a.lds(f"ds_read_b128 v[{FB+4*g}:{FB+4*g+3}], v68 offset:{64*g}", f"q{g}")
        if g >= 4: mf(g - 4)
    for g in range(4, 8): mf(g)

def kgen_stage1(a):
    a("s_nop 7")
    a("v_cvt_pk_bf16_f32 v90, v192, v193")
    a("v_cvt_pk_bf16_f32 v91, v194, v195")
    a("v_cvt_pk_bf16_f32 v92, v196, v197")
    a("v_cvt_pk_bf16_f32 v93, v198, v199")
    for t in range(2):
        for r in range(4):
            reg = 90 + 2*t + (r >> 1)
            ins = "ds_write_b16_d16_hi" if (r & 1) else "ds_write_b16"
            a.lds(f"{ins} v{vKT + 4*t + r}, v{reg}")

EA = 88
def expansion_addr(a):
    a(f"s_lshl_b32 s{sF0}, s{sHV}, 6")
    a(f"v_add_u32 v112, s{sF0}, v{vLANE}")
    a(f"v_lshlrev_b32 v113, 4, v112")
    C = 136 - 0x4300
    a(f"s_mul_i32 s{sF1}, s{sCH}, {KT_CH}")
    a(f"s_add_u32 s{sF1}, s{sF1}, {(L_KT + 2*C) & 0xffffffff}")
    a(f"v_subrev_u32 v114, 8, v113")
    a(f"v_cvt_f32_i32 v115, v114")
    a(f"v_add_u32 v114, {8 - C}, v114")
    a(f"v_mov_b32 v122, {136 - C}")
    for e in range(0, 24, 2):
        a(f"v_add_f32 v116, {fhex(float(e))}, v115")
        a(f"v_add_f32 v117, {fhex(float(e+1))}, v115")
        a(f"v_cvt_pk_bf16_f32 v116, v116, v117")
        a(f"v_bfe_i32 v117, v116, 0, 16")
        a(f"v_ashrrev_i32 v116, 16, v116")
        a(f"v_add_u32 v118, {e}, v114")
        a(f"v_add_u32 v119, {e+1}, v114")
        a(f"v_med3_i32 v117, v118, v117, v122")
        a(f"v_med3_i32 v116, v119, v116, v122")
        a(f"v_lshl_add_u32 v{EA+e}, v117, 1, s{sF1}")
        a(f"v_lshl_add_u32 v{EA+e+1}, v116, 1, s{sF1}")

def expansion_gather(a):
    for e in range(1, 24):
        a.lds(f"ds_read_u16 v{EA + e}, v{EA+e}", f"e{e}")

XE, XO, YE, YO = 128, 138, 148, 158
def expansion_dwords(a):
    a.wait_lg("e23")
    def D(dst, e): a(f"v_lshl_or_b32 v{dst}, v{EA + e - 1}, 16, v{EA + e}")
    for j in range(10): D(XE + j, 22 - 2*j)
    for j in range(10): D(XO + j, 22 - 2*(j+1))
    for j in range(10): D(YE + j, 23 - 2*j)
    for j in range(10): D(YO + j, 23 - 2*(j+1))

vTCW, vTCZ, vXZ, vXW, vCA, vCB, vYV, vXN = 112, 113, 114, 115, 20, 21, 245, 246
def conv_addr_tc(a):
    t0 = 118
    a(f"s_lshl_b32 s{sF1}, s{sHV}, 6")
    a(f"v_add_u32 v{t0}, s{sF1}, v{vLANE}")
    a(f"s_mul_i32 s{sF1}, s{sCH}, {TC_CH}")
    a(f"s_add_u32 s{sF1}, s{sF1}, {L_TC + 16}")
    a(f"v_lshl_add_u32 v{vTCW}, v{t0}, 5, s{sF1}")
    a(f"v_mul_u32_u24 v{t0}, {TC_CP}, v{vLANE}")
    a(f"s_sub_u32 s{sF1}, s{sF1}, 16")
    a(f"v_add_u32 v{vTCZ}, s{sF1}, v{t0}")

def conv_addr(a):
    t0, t1, t2, t3 = 118, 119, 122, 123
    a(f"v_lshrrev_b32 v{t0}, 5, v{vLANE}")
    a(f"v_mul_u32_u24 v{t0}, {XC_CH}, v{t0}")
    a(f"v_and_b32 v{t1}, 31, v{vLANE}")
    a(f"v_lshl_add_u32 v{t0}, v{t1}, 4, v{t0}")
    a(f"v_add_u32 v{vXZ}, {L_XC}, v{t0}")
    a(f"v_lshrrev_b32 v{t0}, 1, v{vLANE}")
    a(f"v_lshlrev_b32 v{t0}, 4, v{t0}")
    a(f"v_and_b32 v{t1}, 1, v{vLANE}")
    a(f"v_mul_u32_u24 v{t1}, {XC_CH}, v{t1}")
    a(f"v_add_u32 v{t0}, v{t0}, v{t1}")
    a(f"s_lshl_b32 s{sF1}, s{sWV}, 10")
    a(f"s_add_u32 s{sF1}, s{sF1}, {L_XC + 512}")
    a(f"v_add_u32 v{vXW}, s{sF1}, v{t0}")
    a(f"v_and_b32 v{t2}, 15, v{vLANE}")
    a(f"v_lshrrev_b32 v{t3}, 4, v{vLANE}")
    a(f"v_and_b32 v{t0}, 7, v{t2}")
    a(f"v_mul_u32_u24 v{t0}, {TC_CP}, v{t0}")
    a(f"v_lshrrev_b32 v{t1}, 1, v{t3}")
    a(f"v_lshlrev_b32 v{t1}, 1, v{t1}")
    a(f"v_and_b32 v{vCA}, 1, v{t3}")
    a(f"v_sub_u32 v{t1}, v{t1}, v{vCA}")
    a(f"v_lshrrev_b32 v{vCA}, 3, v{t2}")
    a(f"v_add_u32 v{t1}, v{t1}, v{vCA}")
    a(f"v_add_u32 v{t1}, 1, v{t1}")
    a(f"v_lshl_add_u32 v{t0}, v{t1}, 4, v{t0}")
    a(f"s_mul_i32 s{sF1}, s{sCH}, {TC_CH}")
    a(f"s_lshl_b32 s{sT4}, s{sHV}, 8")
    a(f"s_add_u32 s{sF1}, s{sF1}, s{sT4}")
    a(f"s_add_u32 s{sF1}, s{sF1}, {L_TC}")
    a(f"v_add_u32 v{vCA}, s{sF1}, v{t0}")
    a(f"v_lshrrev_b32 v{t1}, 1, v{t3}")
    a(f"v_sub_u32 v{t1}, v{t2}, v{t1}")
    a(f"v_lshlrev_b32 v{t1}, 5, v{t1}")
    a(f"v_and_b32 v{t0}, 1, v{t3}")
    a(f"v_lshl_add_u32 v{t1}, v{t0}, 4, v{t1}")
    a(f"s_mul_i32 s{sF1}, s{sCH}, {XC_CH}")
    a(f"s_add_u32 s{sF1}, s{sF1}, {L_XC + 512 - 64*3}")
    a(f"s_lshl_b32 s{sT4}, s{sHV}, 8")
    a(f"s_sub_u32 s{sF1}, s{sF1}, s{sT4}")
    a(f"v_add_u32 v{vCB}, s{sF1}, v{t1}")
    a(f"v_lshlrev_b32 v{vYV}, 5, v{t2}")
    a(f"v_lshl_add_u32 v{vYV}, v{t3}, 3, v{vYV}")
    a(f"s_mul_i32 s{sF1}, s{sCH}, {XC_CH}")
    a(f"s_lshl_b32 s{sT4}, s{sHV}, 11")
    a(f"s_add_u32 s{sF1}, s{sF1}, s{sT4}")
    a(f"s_add_u32 s{sF1}, s{sF1}, {L_XC + 512}")
    a(f"v_add_u32 v{vXN}, s{sF1}, v{vYV}")

def expansion_write(a):
    for i in range(4): a(f"v_mov_b32 v{16+i}, 0")
    with a.group():
        a("s_mov_b64 exec, 0xff")
        a.lds(f"ds_write_b128 v{vTCZ}, v[16:19]")
        a("s_mov_b64 exec, -1")
    for c in range(8):
        E_, O_ = (XE, XO) if c % 2 == 0 else (YE, YO)
        for task in (0, 1):
            if c % 2 == 0: j0 = ((14 if task == 0 else 6) - c) // 2
            else: j0 = ((15 if task == 0 else 7) - c) // 2
            reg = E_ + j0 if j0 % 2 == 0 else O_ + j0 - 1
            a.lds(f"ds_write_b128 v{vTCW}, v[{reg}:{reg+3}] offset:{c*TC_CP + 16*task}")

ACC1 = 128
FR1 = 32
vLA = 4
vLB = 27

def gemm1_addr(a):
    a(f"v_lshrrev_b32 v30, 4, v{vLANE}")
    a(f"v_and_b32 v31, 1, v30")
    a(f"v_lshrrev_b32 v30, 1, v30")
    a(f"v_bfe_u32 v64, v{vLANE}, 2, 2")
    a(f"v_lshl_add_u32 v30, v30, 3, v64")
    a(f"v_lshrrev_b32 v64, 1, v64")
    a(f"v_lshlrev_b32 v64, 1, v64")
    a(f"v_xor_b32 v64, v64, v31")
    a(f"v_and_b32 v65, 3, v{vLANE}")
    a(f"v_lshlrev_b32 v65, 3, v65")
    a(f"v_lshl_add_u32 v66, v30, 7, v65")
    a(f"v_lshl_add_u32 v66, v31, 13, v66")
    for t in range(4):
        a(f"v_xor_b32 v67, {t}, v64")
        a(f"v_lshl_add_u32 v{vLA+t}, v67, 5, v66")
    a(f"v_mul_u32_u24 v30, 96, v30")
    a(f"v_add_u32 v30, v30, v65")
    a(f"v_mul_u32_u24 v31, {B_U}, v31")
    a(f"v_add_u32 v{vLB+1}, v30, v31")
    a(f"v_add_u32 v{vLB}, {B_SLOT[0]}, v{vLB+1}")
    a(f"v_add_u32 v{vLB+2}, 0x10000, v{vLB+1}")

XPRE = 12
def x_loads(a, lo=0, hi=32):
    for s in range(lo, hi):
        a.vmem(f"buffer_load_dwordx4 a[{4*s}:{4*s+3}], v{vL16}, s[{S_WS}:{S_WS+3}], s{sXU + s//4} offen offset:{(s%4)*1024} sc0 sc1", f"xf{s}")

def gelu_tile_scalar(a, t, par):
    acc = ACC1 + 16*t
    T = [64 + 8*par + p for p in range(8)]
    O = 80 + 4*par
    for h in range(2):
        P = range(4*h, 4*h + 4)
        for p in P: a(f"v_mul_f32 v{T[p]}, v{acc+p}, v{acc+p}")
        for p in P: a(f"v_fma_f32 v{T[p]}, v{T[p]}, s{sC2}, v120")
        for p in P: a(f"v_mul_f32 v{T[p]}, v{T[p]}, v{acc+p}")
        for p in P:
            a(f"v_exp_f32 v{T[p]}, v{T[p]}")
            a(f"v_mul_f32 v{acc+p}, v{acc+p}, v{acc+8+p}")
        for p in P: a(f"v_add_f32 v{T[p]}, 1.0, v{T[p]}")
        for p in P: a(f"v_rcp_f32 v{T[p]}, v{T[p]}")
        a(f"s_add_u32 s{sF0}, s{sHFO if t < 4 else sHFB}, {t*1024}")
        for p in P: a(f"v_mul_f32 v{acc+p}, v{acc+p}, v{T[p]}")
        a(f"v_cvt_pk_bf16_f32 v{O+2*h}, v{acc+4*h}, v{acc+4*h+1}")
        a(f"v_cvt_pk_bf16_f32 v{O+2*h+1}, v{acc+4*h+2}, v{acc+4*h+3}")
    a.vmem(f"buffer_store_dwordx4 v[{O}:{O+3}], v{vL16}, s[{S_WS}:{S_WS+3}], s{sF0} offen sc0 sc1", "hst")

def gelu_tile(a, t, par):
    acc = ACC1 + 16*t
    G = [acc + 2*p for p in range(4)]; U = [acc + 8 + 2*p for p in range(4)]
    T = [64 + 8*par + 2*p for p in range(4)]
    O = 80 + 4*par
    for p in range(4): a(f"v_pk_mul_f32 v[{T[p]}:{T[p]+1}], v[{G[p]}:{G[p]+1}], v[{G[p]}:{G[p]+1}]")
    for p in range(4): a(f"v_pk_fma_f32 v[{T[p]}:{T[p]+1}], v[{T[p]}:{T[p]+1}], s[{sC2}:{sC2+1}], v[120:121]")
    for p in range(4): a(f"v_pk_mul_f32 v[{T[p]}:{T[p]+1}], v[{T[p]}:{T[p]+1}], v[{G[p]}:{G[p]+1}]")
    for p in range(4):
        a(f"v_exp_f32 v{T[p]}, v{T[p]}")
        a(f"v_exp_f32 v{T[p]+1}, v{T[p]+1}")
    for p in range(4): a(f"v_pk_mul_f32 v[{G[p]}:{G[p]+1}], v[{G[p]}:{G[p]+1}], v[{U[p]}:{U[p]+1}]")
    for p in range(4): a(f"v_pk_add_f32 v[{T[p]}:{T[p]+1}], v[{T[p]}:{T[p]+1}], 1.0 op_sel_hi:[1,0]")
    for p in range(4):
        a(f"v_rcp_f32 v{T[p]}, v{T[p]}")
        a(f"v_rcp_f32 v{T[p]+1}, v{T[p]+1}")
    a(f"s_add_u32 s{sF0}, s{sHFO if t < 4 else sHFB}, {t*1024}")
    for p in range(4): a(f"v_pk_mul_f32 v[{G[p]}:{G[p]+1}], v[{G[p]}:{G[p]+1}], v[{T[p]}:{T[p]+1}]")
    for p in range(4): a(f"v_cvt_pk_bf16_f32 v{O+p}, v{G[p]}, v{G[p]+1}")
    a.vmem(f"buffer_store_dwordx4 v[{O}:{O+3}], v{vL16}, s[{S_WS}:{S_WS+3}], s{sF0} offen sc0 sc1", "hst")

def gemm1(a):
    a.cm("==== GEMM1 ====")
    seq = [("A", s, t) for s in range(32) for t in range(4)] + [("B", s, t) for s in range(32) for t in range(3)]
    N = len(seq)
    def rd(r, i):
        g, s, t = seq[i]
        u, kk = s // 4, s % 4
        buf = FR1 + 4*(i % 8)
        if g == "A" and u == 4 and kk == 0:
            r(f"v_add_u32 v{vLA+t}, 0x10000, v{vLA+t}")
        for p in range(2):
            if g == "A":
                areg, off = vLA + t, (u % 4)*SA + (16*kk + 4*p)*128
            else:
                sl = B_SLOT[u]
                if sl >= 131072: areg, base = vLB, sl - B_SLOT[0]
                elif sl < 65536: areg, base = vLB + 1, sl
                else: areg, base = vLB + 2, sl - 65536
                off = base + (16*kk + 4*p)*96 + 32*t
            r.lds(f"ds_read_b64_tr_b16 v[{buf+2*p}:{buf+2*p+1}], v{areg} offset:{off}", f"F{i}")
    BAR = {68: ["wdt", "A5", "A6", "A7", "B0", "B1"], 140: ["B2", "B3", "B4", "B5", "hst"], 164: [], 188: ["B6", "B7"]}
    if OPTS.get("inloop"):
        BAR = {68: ["wdt", "A5"], 84: ["A6"], 100: ["A7"], 116: ["B0", "B1"], 140: ["B2", "B3", "B4", "B5", "hst"], 164: [], 188: ["B6", "B7"]}
    if OPTS.get("exptail"): del BAR[164]
    gaps = []
    for i in range(N):
        g, s, t = seq[i]
        r = Rec()
        if i in BAR:
            with r.group():
                for tg in BAR[i]: r.wait_vm(tg)
                r("s_barrier")
            if i == 68:
                flag_store(r, sP3)
            if i == 140:
                flag_store(r, sP2)
        with r.group():
            if t == 0 and g == "A": r.wait_vm(f"xf{s}")
            if i % 2 == 0: r.wait_lg(f"F{min(i + 1, N - 1)}")
            tt = t if g == "A" else 4 + t
            acc = ACC1 + 16*tt
            c = "0" if s == 0 else f"v[{acc}:{acc+15}]"
            r(f"v_mfma_f32_32x32x16_bf16 v[{acc}:{acc+15}], v[{FR1+4*(i%8)}:{FR1+4*(i%8)+3}], a[{4*s}:{4*s+3}], {c}")
        if i + 8 < N: rd(r, i + 8)
        if OPTS.get("fine") and i % 32 == 0: cstamp(r, 18 + i // 32)
        gaps.append(r.atoms)
    def S(fn, lo, hi):
        r = Rec(); fn(r); return (r.atoms, lo, hi)
    def xt(r):
        r(f"v_lshrrev_b32 v{vPA}, 2, v{vLANE}")
        r(f"v_lshlrev_b32 v{vPA}, 8, v{vPA}")
        r(f"v_and_b32 v{vPOLL}, 3, v{vLANE}")
        r(f"v_lshl_add_u32 v{vPA}, v{vPOLL}, 4, v{vPA}")
        r(f"v_add_u32 v{vPA}, {WS_F4}, v{vPA}")
        poll_issue(r, "c1", 4)
    def xt2(r):
        poll_check(r, "c1", 4)
    def xt3(r):
        r(f"v_lshrrev_b32 v3, 1, v{vLANE}")
        r(f"v_lshlrev_b32 v3, 13, v3")
        r(f"v_and_b32 v8, 1, v{vLANE}")
        r(f"v_lshl_add_u32 v3, v8, 4, v3")
        r(f"s_lshl_b32 s{sG1}, s{sCP}, 5")
        r(f"s_add_u32 s{sG1}, s{sG1}, {WS_XT}")
        r(f"s_lshl_b32 s{sG0}, s{sWV}, 19")
        r(f"s_add_u32 s{sG1}, s{sG1}, s{sG0}")
        r.vmem(f"buffer_load_dwordx4 v[8:11], v3, s[{S_WS}:{S_WS+3}], s{sG1} offen sc0 sc1", "xt")
        r(f"s_add_u32 s{sG1}, s{sG1}, {32*8192}")
        r.vmem(f"buffer_load_dwordx4 v[12:15], v3, s[{S_WS}:{S_WS+3}], s{sG1} offen sc0 sc1", "xt")
    CAP = OPTS.get("cap", 32)
    X2 = OPTS.get("x2", XPRE)
    if OPTS.get("inloop"):
        ops = [(4*s_, "x", s_) for s_ in range(X2, 32)] + [(68, "A", 5), (84, "A", 6), (100, "A", 7), (115, "B", 0), (116, "B", 1)]
        ops.sort()
        def vm(r):
            for dl_, kind, k in ops:
                if kind == "x": x_loads(r, k, k + 1)
                elif kind == "A": dma_A(r, k)
                else: dma_B(r, k)
        sa = [S(vm, 0, OPTS.get("vmend", 72)), S(lambda r: (dma_B(r, 2), dma_B(r, 3), dma_B(r, 4), dma_B(r, 5)), max(70, OPTS.get("vmend", 72)) + 1, 126), S(expansion_addr, 4, 124)]
    else:
        sa = [S(lambda r: x_loads(r, X2, 32), OPTS.get("xs", 0), 66),
              S(lambda r: (dma_B(r, 2), dma_B(r, 3), dma_B(r, 4), dma_B(r, 5)), 70, 120),
              S(expansion_addr, 4, 124)]
    for i in range(8): rd(a, i)
    if OPTS.get("pre"):
        a.wait_vm("xf0"); stamp(a, 31)
    play(a, sched(gaps[:128], sa, CAP))
    a("s_nop 5")
    g = Rec()
    for t in range(4): gelu_tile(g, t, t % 2)
    d = Rec(); xt(d)
    play(a, weave(g.atoms, (d.atoms, 4, 12)))
    c = Rec(); xt2(c)
    play(a, c.atoms)
    if OPTS.get("fine"): cstamp(a, 26)
    WB = OPTS.get("wb", 8)
    n0 = min(WB, 1)
    sb = [S(lambda r: [ldw(r, ks) for ks in range(0, n0)], 0, 12),
          S(lambda r: (dma_B(r, 6), dma_B(r, 7)), 13, 30),
          S(lambda r: [ldw(r, ks) for ks in range(n0, WB)], 31, 94),
          S(xt3, OPTS.get("xtpos", 60), OPTS.get("xtpos", 60) + 12),
          S(lambda r: (expansion_gather(r), expansion_dwords(r), conv_addr_tc(r)), 0, 36),
          S(lambda r: (expansion_write(r), conv_addr(r)), 38, 94)]
    if OPTS.get("exptail") == 1:
        sb = sb[:4] + [S(lambda r: (conv_addr_tc(r), conv_addr(r)), 2, 92)]
    if OPTS.get("exptail") == 2:
        sb = sb[:4] + [S(lambda r: (expansion_gather(r), expansion_dwords(r), conv_addr_tc(r), conv_addr(r)), 2, 94)]
    play(a, sched(gaps[128:], sb, CAP))

def gemm1_tail(a):
    g = Rec()
    for t in range(4, 7): gelu_tile(g, t, t % 2)
    a("s_nop 9")
    n = len(g.atoms)
    WB = OPTS.get("wb", 8); WT = OPTS.get("wt", 14)
    w = Rec()
    for ks in range(WB, WT): ldw(w, ks)
    if OPTS.get("fine2"): cstamp(a, 28)
    if OPTS.get("exptail") == 2:
        play(a, weave(g.atoms, (w.atoms, 4, n - 4)))
        x = Rec(); expansion_write(x)
        w2 = Rec()
        for ks in range(WT, OPTS.get("wt2", WT)): ldw(w2, ks)
        play(a, weave(x.atoms, (w2.atoms, 2, len(x.atoms) - 1)))
    elif OPTS.get("exptail"):
        e = Rec(); expansion_gather(e)
        play(a, weave(g.atoms, (e.atoms, n // 2, n - 2), (w.atoms, 4, n - 4)))
        x = Rec(); expansion_dwords(x); expansion_write(x)
        w2 = Rec()
        for ks in range(WT, OPTS.get("wt2", WT)): ldw(w2, ks)
        play(a, weave(x.atoms, (w2.atoms, 2, len(x.atoms) - 1)))
    else:
        play(a, weave(g.atoms, (w.atoms, 4, n - 4)))
    if OPTS.get("fine2"): cstamp(a, 29)

def conv(a):
    a.cm("==== convolution ====")
    a(f"s_lshl_b32 s{sT1}, s{sRB}, 8")
    a(f"s_lshl_b32 s{sT2}, s{sCS}, 2")
    a(f"s_add_u32 s{sT1}, s{sT1}, s{sT2}")
    a(f"s_add_u32 s{sT1}, s{sT1}, {WS_F2}")
    a("s_cmp_eq_u32 s2, 0")
    a(f"s_cselect_b32 s{sT0}, s{sOOB}, 0x7ff00000")
    a(f"v_mov_b32 v{vPA}, s{sT0}")
    a(f"v_mov_b32 v{vPOLL}, s{sNONCE}")
    a.wait_vm("xt")
    a("s_barrier")
    stamp(a, 8)
    a.lds(f"ds_write_b128 v{vXW}, v[8:11]")
    a.lds(f"ds_write_b128 v{vXW}, v[12:15] offset:512")
    a.lds(f"ds_write_b128 v{vXZ}, v[16:19]")
    with a.group():
        a("s_mov_b64 exec, 1")
        a.vmem(f"buffer_store_dword v{vPOLL}, v{vPA}, s[{S_WS}:{S_WS+3}], 0 offen sc0 sc1", "flag")
        a("s_mov_b64 exec, -1")
    if OPTS.get("fine2"): cstamp(a, 30)
    a.wait_vm("hst")
    a.drain_lg()
    a("s_barrier")
    if OPTS.get("fine2"): cstamp(a, 31)
    flag_store(a, sT1)
    stamp(a, 9)
    ACC = 32
    FA = [64, 128]; FB = [96, 160]
    def ld(r, rp, buf, k):
        r.lds(f"ds_read_b128 v[{FA[buf]+4*k}:{FA[buf]+4*k+3}], v{vCA} offset:{64*rp + 512*k}", f"c{rp}_{k}")
        r.lds(f"ds_read_b128 v[{FB[buf]+4*k}:{FB[buf]+4*k+3}], v{vCB} offset:{512*k + 64*(3-rp)}", f"c{rp}_{k}")
    for k in range(8): ld(a, 0, 0, k)
    gaps = []
    for rp in range(4):
        buf = rp % 2
        pairs = sorted([(j, kap) for j in range(8) for kap in range(j + 1)], key=lambda p: (max(p[1], p[0]-p[1]), p[0]))
        nxt = list(range(8)) if rp < 3 else []
        first = {j: True for j in range(8)}
        for n, (j, kap) in enumerate(pairs):
            mu = j - kap
            acc = ACC + 4*j
            c = "0" if (rp == 0 and first[j]) else f"v[{acc}:{acc+3}]"
            first[j] = False
            r = Rec()
            with r.group():
                r.wait_lg(f"c{rp}_{max(kap, mu)}")
                r(f"v_mfma_f32_16x16x32_bf16 v[{acc}:{acc+3}], v[{FA[buf]+4*kap}:{FA[buf]+4*kap+3}], v[{FB[buf]+4*mu}:{FB[buf]+4*mu+3}], {c}")
            if rp < 3 and n >= 4 and (n - 4) % 4 == 0 and nxt:
                ld(r, rp + 1, 1 - buf, nxt.pop(0))
            if OPTS.get("fine2") and n == 0: cstamp(r, 18 + rp)
            gaps.append(r.atoms)
    def S(fn, lo, hi):
        r = Rec(); fn(r); return (r.atoms, lo, hi)
    def hpoll(r, base, name):
        r(f"v_and_b32 v{vPA}, 3, v{vLANE}")
        r(f"v_lshlrev_b32 v{vPA}, 2, v{vPA}")
        r(f"s_lshr_b32 s{sG1}, s{sRT}, 1")
        r(f"s_lshl_b32 s{sG1}, s{sG1}, 8")
        r(f"s_lshl_b32 s{sSPIN}, s{sWV}, 4")
        r(f"s_add_u32 s{sG1}, s{sG1}, s{sSPIN}")
        r(f"s_add_u32 s{sG1}, s{sG1}, {base}")
        r(f"v_add_u32 v{vPA}, s{sG1}, v{vPA}")
        poll_issue(r, name, 1)
    def ha(r):
        poll_check(r, "g2a", 1)
        for ks in range(HPRE): ldh(r, ks)
    WT = OPTS.get("wt", 14); WT2 = OPTS.get("wt2", WT)
    c0 = OPTS.get("hapos", 24)
    def wh(r):
        for ks in range(WT2, 28): ldw(r, ks)
        poll_check(r, "g2a", 1)
        for ks in range(HPRE): ldh(r, ks)
    play(a, sched(gaps, [S(lambda r: hpoll(r, WS_F5, "g2a"), 0, 6), S(gemm2_addr, 6, c0 - 2),
                         S(wh, 8, OPTS.get("whend", 124)),
                         S(lambda r: hpoll(r, WS_F2, "g2"), 126, 140)], 20, 16))
    if OPTS.get("fine2"): cstamp(a, 22)
    stamp(a, 10)
    a(f"s_lshl_b32 s{sT0}, s{sWV}, 12")
    a(f"s_add_u32 s{sT0}, s{sT0}, {L_RED}")
    a(f"v_add_u32 v6, s{sT0}, v{vL16}")
    a(f"s_xor_b32 s{sT0}, s{sWV}, 1")
    a(f"s_lshl_b32 s{sT0}, s{sT0}, 12")
    a(f"s_add_u32 s{sT0}, s{sT0}, {L_RED}")
    a(f"v_add_u32 v7, s{sT0}, v{vL16}")
    a(f"s_cmp_eq_u32 s{sHV}, 0")
    a("s_cbranch_scc0 L_red_hv1")
    for i in range(4):
        a(f"ds_write_b128 v6, v[{ACC+16+4*i}:{ACC+16+4*i+3}] offset:{1024*i}")
    a("s_branch L_red_w")
    a.label("L_red_hv1")
    for i in range(4):
        a(f"ds_write_b128 v6, v[{ACC+4*i}:{ACC+4*i+3}] offset:{1024*i}")
    for i in range(8):
        a(f"v_pk_mov_b32 v[{ACC+2*i}:{ACC+2*i+1}], v[{ACC+16+2*i}:{ACC+16+2*i+1}], v[{ACC+16+2*i}:{ACC+16+2*i+1}] op_sel:[0,1]")
    a.label("L_red_w")
    a(f"s_lshl_b32 s{sT2}, s{sDSK}, 16")
    a(f"s_and_b32 s{sT3}, s{sDSK}, s{sMASK}")
    a(f"s_cmp_eq_u32 s{sCH}, 0")
    a(f"s_cselect_b32 s{sC1}, s{sT2}, s{sT3}")
    a(f"s_mov_b32 s{sC1+1}, s{sC1}")
    a(f"s_lshl_b32 s{sT1}, s{sHV}, 11")
    a(f"s_lshl_b32 s{sT0}, s{sCP}, 1")
    a(f"s_add_u32 s{sT0}, s{sT0}, s{sCH}")
    a(f"s_lshl_b32 s{sT0}, s{sT0}, 12")
    a(f"s_add_u32 s{sT0}, s{sT0}, s{sT1}")
    a(f"s_add_u32 s{sT0}, s{sT0}, {WS_YT}")
    for i in range(4):
        a.lds(f"ds_read_b64 v[{80+2*i}:{80+2*i+1}], v{vXN} offset:{512*i}", "xn")
    a.drain_lg()
    a("s_barrier")
    for i in range(4):
        a.lds(f"ds_read_b128 v[{64+4*i}:{64+4*i+3}], v7 offset:{1024*i}", "red")
    for i in range(4):
        for p in range(2):
            x = 80 + 2*i + p
            a(f"v_lshlrev_b32 v90, 16, v{x}")
            a(f"v_and_b32 v91, s{sMASK}, v{x}")
            a(f"v_pk_fma_f32 v[{ACC+4*i+2*p}:{ACC+4*i+2*p+1}], v[90:91], s[{sC1}:{sC1+1}], v[{ACC+4*i+2*p}:{ACC+4*i+2*p+1}]")
    a.wait_lg("red")
    for i in range(4):
        for p in range(2):
            a(f"v_pk_add_f32 v[{ACC+4*i+2*p}:{ACC+4*i+2*p+1}], v[{ACC+4*i+2*p}:{ACC+4*i+2*p+1}], v[{64+4*i+2*p}:{64+4*i+2*p+1}]")
        a(f"v_cvt_pk_bf16_f32 v{92+2*i}, v{ACC+4*i}, v{ACC+4*i+1}")
        a(f"v_cvt_pk_bf16_f32 v{93+2*i}, v{ACC+4*i+2}, v{ACC+4*i+3}")
        a.vmem(f"buffer_store_dwordx2 v[{92+2*i}:{93+2*i}], v{vYV}, s[{S_WS}:{S_WS+3}], s{sT0} offen offset:{512*i} sc0 sc1", "yst")
    stamp(a, 11)

HS = [("a", 96 + 8*i) for i in range(4)] + [("v", 192 + 8*i) for i in range(6)] + [("v", 32 + 8*i) for i in range(4)]
PD = len(HS)
HPRE = 8
vXO = 30
vYO = 31
vYW, vYR = 248, 249
L_YT = 98304
vH1 = 247

vWT = 200
vL16B = 253
sWTS, sWTD = 49, 50
def wdt_setup(a):
    t0, t1, t2, t3 = 124, 125, 126, 127
    a(f"v_lshrrev_b32 v{t0}, 4, v{vLANE}")
    a(f"v_lshrrev_b32 v{t1}, 1, v{t0}")
    a(f"v_bfe_u32 v{t2}, v{vLANE}, 2, 2")
    a(f"v_lshl_add_u32 v{t1}, v{t1}, 2, v{t2}")
    a(f"v_lshlrev_b32 v{t1}, 7, v{t1}")
    a(f"v_and_b32 v{t0}, 1, v{t0}")
    a(f"v_lshlrev_b32 v{t0}, 1, v{t0}")
    a(f"v_bfe_u32 v{t3}, v{vLANE}, 1, 1")
    a(f"v_add_u32 v{t0}, v{t0}, v{t3}")
    a(f"v_lshrrev_b32 v{t2}, 1, v{t2}")
    a(f"v_lshlrev_b32 v{t2}, 2, v{t2}")
    a(f"v_xor_b32 v{t3}, v{t0}, v{t2}")
    a(f"v_xor_b32 v{t2}, 4, v{t3}")
    a(f"v_and_b32 v{t0}, 1, v{vLANE}")
    a(f"v_lshl_add_u32 v{t1}, v{t0}, 3, v{t1}")
    a(f"v_lshl_add_u32 v{t3}, v{t3}, 4, v{t1}")
    a(f"v_lshl_add_u32 v{t2}, v{t2}, 4, v{t1}")
    a(f"s_lshl_b32 s{sT0}, s{sWV}, 11")
    a(f"s_add_u32 s{sT0}, s{sT0}, {L_LNX}")
    a(f"v_add_u32 v{vWT}, s{sT0}, v{t3}")
    a(f"v_add_u32 v{vWT+1}, s{sT0}, v{t2}")
    a(f"v_add_u32 v{vL16B}, 4096, v{vL16}")
    a(f"s_lshl_b32 s{sT0}, s2, 2")
    a(f"s_add_u32 s{sT0}, s{sT0}, s{sWV}")
    a(f"s_and_b32 s{sT1}, s{sT0}, 7")
    a(f"s_lshr_b32 s{sT2}, s{sT0}, 3")
    a(f"s_lshl_b32 s{sWTS}, s{sT2}, 14")
    a(f"s_lshl_b32 s{sT3}, s{sT1}, 7")
    a(f"s_add_u32 s{sWTS}, s{sWTS}, s{sT3}")
    a(f"s_mul_i32 s{sT1}, s{sT1}, 112")
    a(f"s_add_u32 s{sT1}, s{sT1}, s{sT2}")
    a(f"s_lshl_b32 s{sWTD}, s{sT1}, 11")
    a(f"s_add_u32 s{sWTD}, s{sWTD}, {WS_WDT}")
    with a.group():
        a(f"s_cmp_lt_u32 s{sT0}, 896")
        a(f"s_cselect_b32 s{sWTS}, s{sWTS}, 0x7ff00000")
        a(f"s_cselect_b32 s{sWTD}, s{sWTD}, 0x7ff00000")

def wdt_load(a):
    for i in range(2):
        a(f"s_lshl_b32 s{sG0}, s{sWV}, 11")
        a(f"s_add_u32 m0, s{sG0}, {L_LNX + i*1024}")
        a(f"s_add_u32 s{sD0}, s{sWTS}, {8*i*1024}")
        a.vmem(f"buffer_load_dwordx4 v{vDW}, s[{S_D}:{S_D+3}], s{sD0} offen lds", "wdl")

def wdt_store(a):
    a.wait_vm("wdl")
    for m in range(2):
        for p in range(2):
            a.lds(f"ds_read_b64_tr_b16 v[{124 - 12 + 4*m + 2*p}:{124 - 12 + 4*m + 2*p + 1}], v{vWT+m} offset:{p*1024}", "wdr")
    a.wait_lg("wdr")
    for m in range(2):
        a.vmem(f"buffer_store_dwordx4 v[{112 + 4*m}:{112 + 4*m + 3}], v{vL16}, s[{S_WS}:{S_WS+3}], s{sWTD} offen offset:{m*1024} sc0 sc1", "wdt")

def wreg(ks):
    return 128 + 8*ks if ks < 16 else 8*(ks - 16)

def ldw(a, ks):
    v = vL16 if ks % 4 < 2 else vL16B
    for m in range(2):
        b = wreg(ks) + 4*m
        a.vmem(f"buffer_load_dwordx4 a[{b}:{b+3}], v{v}, s[{S_WS}:{S_WS+3}], s{sDU + ks//4} offen offset:{(ks % 2)*2048 + m*1024} sc0 sc1", f"w{ks}")

def gemm2_addr(a):
    a(f"v_and_b32 v10, 31, v{vLANE}")
    a(f"v_lshrrev_b32 v11, 5, v{vLANE}")
    a(f"v_lshlrev_b32 v12, 10, v10")
    a(f"v_lshl_add_u32 v{vXO}, v11, 3, v12")
    a(f"v_lshrrev_b32 v10, 2, v{vLANE}")
    a(f"v_lshlrev_b32 v10, 12, v10")
    a(f"v_and_b32 v11, 3, v{vLANE}")
    a(f"v_lshl_add_u32 v{vYO}, v11, 4, v10")
    a(f"s_lshl_b32 s{sG0}, s{sWV}, 11")
    a(f"s_add_u32 s{sG0}, s{sG0}, {L_YT}")
    a(f"v_add_u32 v{vYW}, s{sG0}, v{vL16}")
    a(f"v_lshrrev_b32 v10, 5, v{vLANE}")
    a(f"v_lshlrev_b32 v10, 8, v10")
    a(f"v_bfe_u32 v11, v{vLANE}, 2, 2")
    a(f"v_lshl_add_u32 v10, v11, 6, v10")
    a(f"v_bfe_u32 v11, v{vLANE}, 4, 1")
    a(f"v_lshl_add_u32 v10, v11, 5, v10")
    a(f"v_and_b32 v11, 3, v{vLANE}")
    a(f"v_lshl_add_u32 v10, v11, 3, v10")
    a(f"v_add_u32 v{vYR}, s{sG0}, v10")
    a(f"v_add_u32 v{vH1}, {112*1024}, v{vL16}")
    a(f"s_lshl_b32 s{sG0}, s{sRT}, 6")
    a(f"s_lshl_b32 s{sP3}, s{sHV}, 5")
    a(f"s_add_u32 s{sG0}, s{sG0}, s{sP3}")
    a(f"s_lshl_b32 s{sP3}, s{sG0}, 10")
    a(f"s_lshl_b32 s{sG0}, s{sCT}, 7")
    a(f"s_add_u32 s{sP3}, s{sP3}, s{sG0}")
    a(f"s_lshl_b32 s{sG0}, s{sCH}, 6")
    a(f"s_add_u32 s{sP3}, s{sP3}, s{sG0}")

def hreg(ks, n):
    c, b = HS[ks] if ks < PD else ("a", wreg(ks - PD))
    return f"{c}[{b+4*n}:{b+4*n+3}]"

def ldh(a, ks):
    a.vmem(f"buffer_load_dwordx4 {hreg(ks, 0)}, v{vL16}, s[{S_WS}:{S_WS+3}], s{sHU + ks//4} offen offset:{(ks%4)*1024} sc0 sc1", f"h{ks}")
    a.vmem(f"buffer_load_dwordx4 {hreg(ks, 1)}, v{vH1}, s[{S_WS}:{S_WS+3}], s{sHU + ks//4} offen offset:{(ks%4)*1024} sc0 sc1", f"h{ks}")

def gemm2(a):
    a.cm("==== GEMM2 ====")
    a(f"s_lshl_b32 s{sT1}, s{sXC}, 8")
    a(f"s_lshl_b32 s{sT2}, s{sJ}, 2")
    a(f"s_add_u32 s{sT1}, s{sT1}, s{sT2}")
    a(f"s_add_u32 s{sT1}, s{sT1}, {WS_F3}")
    ACC = 128
    GT = 4
    a(f"s_lshl_b32 s{sT0}, s{sWV}, 12")
    a(f"v_add_u32 v6, s{sT0}, v{vL16}")
    a(f"s_lshl_b32 s{sT0}, s{sWV}, 14")
    a(f"v_add_u32 v3, s{sT0}, v{vL16}")
    stamp(a, 12)
    order = [(ks, m, n) for ks in range(28 - GT) for m in range(2) for n in range(2)]
    order += [(ks, m, n) for m in range(2) for n in range(2) for ks in range(28 - GT, 28)]
    def handover(r, t):
        with r.group():
            if t < 3: r("s_nop 5")
            r(f"s_cmp_eq_u32 s{sWV}, {t}")
            r(f"s_cbranch_scc1 L_own{t}")
            for i in range(4):
                r(f"ds_write_b128 v6, v[{ACC+16*t+4*i}:{ACC+16*t+4*i+3}] offset:{t*16384 + i*1024}")
            r.label(f"L_own{t}")
    gaps = []; seen = set()
    for g, (ks, m, n) in enumerate(order):
        acc = ACC + 16*(2*m + n)
        c = "0" if ks == 0 else f"v[{acc}:{acc+15}]"
        r = Rec()
        with r.group():
            if ks not in seen:
                seen.add(ks)
                r.wait_vm(f"w{ks}")
                r.wait_vm(f"h{ks}")
            r(f"v_mfma_f32_32x32x16_bf16 v[{acc}:{acc+15}], a[{wreg(ks)+4*m}:{wreg(ks)+4*m+3}], {hreg(ks, n)}, {c}")
        if OPTS.get("fine2") and g % 28 == 0: cstamp(r, 23 + g // 28)
        base = 4*(28 - GT)
        if g >= base + GT and (g - base) % GT == GT - 1 and (g - base) // GT >= 1:
            handover(r, (g - base) // GT - 1)
        gaps.append(r.atoms)
    def S(fn, lo, hi):
        r = Rec(); fn(r); return (r.atoms, lo, hi)
    streams = []
    ops = sorted([(4*k, "h", k) for k in range(HPRE, 28)])
    fixed = {}; place = -1
    for dl_, kind, k in ops:
        r = Rec()
        if k == 16: poll_check(r, "g2", 1)
        ldh(r, k); e = 4*(k - PD) + 3 if k >= PD else 0
        assert k - PD < 28 - GT
        place = max(place + 1, e)
        assert place < dl_ - 8, (kind, k, place)
        fixed.setdefault(place, []).extend(r.atoms)
        place += OPTS.get("g2sp", 1)
    for g in range(len(gaps)): gaps[g] = gaps[g] + fixed.get(g, [])
    def yf(r):
        with r.group():
            r.wait_vm("yst")
            r("s_barrier")
        flag_store(r, sT1)
    streams.append(S(yf, OPTS.get('yfpos', 16), OPTS.get('yfpos', 16) + 2))
    def yp(r):
        r(f"v_and_b32 v{vPA}, 15, v{vLANE}")
        r(f"v_lshlrev_b32 v{vPA}, 2, v{vPA}")
        r(f"s_lshl_b32 s{sG1}, s{sCT}, 8")
        r(f"s_add_u32 s{sG1}, s{sG1}, {WS_F3}")
        r(f"s_lshl_b32 s{sSPIN}, s{sCH}, 6")
        r(f"s_add_u32 s{sG1}, s{sG1}, s{sSPIN}")
        r(f"v_add_u32 v{vPA}, s{sG1}, v{vPA}")
        poll_issue(r, "g3", 1)
    streams.append(S(yp, OPTS.get('yppos', 66), OPTS.get('yppos', 66) + 6))
    YR = 64
    def yl(r):
        poll_check(r, "g3", 1)
        r(f"s_lshl_b32 s{sG0}, s{sCT}, 6")
        r(f"s_lshl_b32 s{sG1}, s{sCH}, 5")
        r(f"s_add_u32 s{sG0}, s{sG0}, s{sG1}")
        r(f"s_lshl_b32 s{sG0}, s{sG0}, 12")
        r(f"s_lshl_b32 s{sG1}, s{sRT}, 7")
        r(f"s_add_u32 s{sG0}, s{sG0}, s{sG1}")
        r(f"s_lshl_b32 s{sG1}, s{sHV}, 6")
        r(f"s_add_u32 s{sG0}, s{sG0}, s{sG1}")
        r(f"s_add_u32 s{sG0}, s{sG0}, {WS_YT}")
        r(f"s_add_u32 s{sG1}, s{sG0}, {16*4096}")
        r.vmem(f"buffer_load_dwordx4 v[{YR}:{YR+3}], v{vYO}, s[{S_WS}:{S_WS+3}], s{sG0} offen sc0 sc1", "yr")
        r.vmem(f"buffer_load_dwordx4 v[{YR+4}:{YR+7}], v{vYO}, s[{S_WS}:{S_WS+3}], s{sG1} offen sc0 sc1", "yr")
    def xl(r):
        for rr in range(4):
            r.vmem(f"buffer_load_dwordx2 v[{80+2*rr}:{80+2*rr+1}], v{vXO}, s[{S_X}:{S_X+3}], s{sP3} offen offset:{16*rr}", "xr")
    streams.append(S(xl, 40, 56))
    streams.append(S(yl, OPTS.get('yppos', 66) + 14, min(111, OPTS.get('yppos', 66) + 34)))
    BASE = 96
    def yadd(r):
        r.wait_vm("yr")
        r.lds(f"ds_write_b128 v{vYW}, v[{YR}:{YR+3}]", "yw")
        r.lds(f"ds_write_b128 v{vYW}, v[{YR+4}:{YR+7}] offset:1024", "yw")
        r.wait_vm("xr")
        for rr in range(4):
            for p in range(2):
                o = BASE + 4*rr + 2*p
                src = 80 + 2*rr + p
                r(f"v_lshlrev_b32 v{o}, 16, v{src}")
                r(f"v_and_b32 v{o+1}, s{sMASK}, v{src}")
        r.wait_lg("yw")
        for rr in range(4):
            r.lds(f"ds_read_b64_tr_b16 v[{YR+8+2*rr}:{YR+8+2*rr+1}], v{vYR} offset:{rr*512}", f"yt{rr}")
        for rr in range(4):
            r.wait_lg(f"yt{rr}")
            for p in range(2):
                o = BASE + 4*rr + 2*p
                src = YR + 8 + 2*rr + p
                r(f"v_lshlrev_b32 v8, 16, v{src}")
                r(f"v_and_b32 v9, s{sMASK}, v{src}")
                r(f"v_add_f32 v{o}, v{o}, v8")
                r(f"v_add_f32 v{o+1}, v{o+1}, v9")
    if not OPTS.get("lateadd"): streams.append(S(yadd, 102, 111))
    play(a, sched(gaps, streams, 32))
    if OPTS.get("fine2"): cstamp(a, 27)
    stamp(a, 13)
    late = OPTS.get("lateadd")
    R0 = 112 if late else 96
    a("s_nop 7")
    a("s_nop 3")
    r = Rec(); handover(r, 3); play(a, r.atoms)
    for v in range(4):
        a(f"s_cmp_lg_u32 s{sWV}, {v}")
        a(f"s_cbranch_scc1 L_notme{v}")
        for i in range(8):
            if late: a(f"v_pk_mov_b32 v[{R0+2*i}:{R0+2*i+1}], v[{ACC+16*v+2*i}:{ACC+16*v+2*i+1}], v[{ACC+16*v+2*i}:{ACC+16*v+2*i+1}] op_sel:[0,1]")
            else: a(f"v_pk_add_f32 v[{96+2*i}:{97+2*i}], v[{96+2*i}:{97+2*i}], v[{ACC+16*v+2*i}:{ACC+16*v+2*i+1}]")
        if v < 3: a("s_branch L_wdone")
        a.label(f"L_notme{v}")
    a.label("L_wdone")
    for d in range(1, 4):
        a(f"s_add_u32 s{sT2}, s{sWV}, {d}")
        a(f"s_and_b32 s{sT2}, s{sT2}, 3")
        a(f"s_lshl_b32 s{sT2}, s{sT2}, 12")
        a(f"v_add_u32 v{10+d}, s{sT2}, v3")
    a("s_waitcnt lgkmcnt(0)")
    a.lg.drain()
    a("s_barrier")
    stamp(a, 14)
    for d in range(1, 4):
        for i in range(4):
            a.lds(f"ds_read_b128 v[{192 + 16*(d-1) + 4*i}:{192 + 16*(d-1) + 4*i + 3}], v{10+d} offset:{i*1024}", f"r{d}")
    if late:
        r = Rec(); yadd(r); play(a, r.atoms)
    for d in range(1, 4):
        a.wait_lg(f"r{d}")
        for p in range(8):
            a(f"v_pk_add_f32 v[{R0+2*p}:{R0+2*p+1}], v[{R0+2*p}:{R0+2*p+1}], v[{192+16*(d-1)+2*p}:{192+16*(d-1)+2*p+1}]")
    if late:
        for p in range(8):
            a(f"v_pk_add_f32 v[{96+2*p}:{96+2*p+1}], v[{96+2*p}:{96+2*p+1}], v[{R0+2*p}:{R0+2*p+1}]")
    for rr in range(4):
        a(f"v_cvt_pk_bf16_f32 v{16+2*rr}, v{96+4*rr}, v{96+4*rr+1}")
        a(f"v_cvt_pk_bf16_f32 v{17+2*rr}, v{96+4*rr+2}, v{96+4*rr+3}")
        a.vmem(f"buffer_store_dwordx2 v[{16+2*rr}:{17+2*rr}], v{vXO}, s[{S_O}:{S_O+3}], s{sP3} offen offset:{16*rr}" + {0: "", 1: " sc0 sc1", 2: " nt", 3: " sc1", 4: " sc0 sc1 nt"}[OPTS.get("outwt", 0)], "ost")

def build(opts):
    global HPRE
    OPTS.clear(); OPTS.update(opts)
    DEFER.clear()
    HPRE = opts.get("hpre", 10)
    assert HPRE <= 10
    a = Asm()
    prologue(a)
    layernorm(a)
    early = OPTS.get("earlyflag", 0)
    late_tables(a)
    if early < 2: kt_addr(a)
    if early:
        a.wait_vm("lnst")
        a("s_barrier")
        flag_store(a, sP3)
        stamp(a, 3)
    if early >= 2: kt_addr(a)
    wdt_setup(a)
    nb = OPTS.get("dbunch", 0)
    for u in range(1 + OPTS.get("lnA", 0), 1 + nb): dma_A(a, u)
    k = Rec(); kgen_chains(k)
    d = Rec()
    wdt_load(d)
    for u in range(1 + max(nb, OPTS.get("lnA", 0)), 5): dma_A(d, u)
    f = Rec()
    if not OPTS.get("earlyflag"):
        with f.group():
            f.wait_vm("lnst")
            f("s_barrier")
        flag_store(f, sP3)
        stamp(f, 3)
    n = len(k.atoms)
    fp = int(n*OPTS.get('fpos', 10)/100)
    p = Rec()
    p(f"v_and_b32 v{vPA}, 3, v{vLANE}")
    p(f"v_lshlrev_b32 v{vPA}, 2, v{vPA}")
    p(f"s_lshl_b32 s{sG1}, s{sRB}, 8")
    p(f"s_add_u32 s{sG1}, s{sG1}, {WS_F1}")
    p(f"s_lshl_b32 s{sSPIN}, s{sWV}, 4")
    p(f"s_add_u32 s{sG1}, s{sG1}, s{sSPIN}")
    p(f"v_add_u32 v{vPA}, s{sG1}, v{vPA}")
    poll_issue(p, "g1", 1)
    pp = int(n*OPTS.get('ppos', 96)/100)
    cp = OPTS.get("cpos", 0)
    if cp:
        c = Rec(); poll_check(c, "g1", 1); x_loads(c, 0, OPTS.get("x1", XPRE))
        cp = int(n*cp/100)
        play(a, weave(k.atoms, (d.atoms, fp + 4, min(pp - 8, int(n*OPTS.get('dpos', 80)/100))), (f.atoms, fp, fp + 1), (p.atoms, pp - 5, pp), (c.atoms, cp, min(n, cp + 30))))
        stamp(a, 4); stamp(a, 5)
    else:
        play(a, weave(k.atoms, (d.atoms, fp + 4, int(n*OPTS.get('dpos', 80)/100)), (f.atoms, fp, fp + 1), (p.atoms, pp - 5, pp)))
        stamp(a, 4)
        poll_check(a, "g1", 1)
        stamp(a, 5)
        x_loads(a, 0, OPTS.get("x1", XPRE))
    if OPTS.get("pre"): stamp(a, 27)
    if OPTS.get("earlybar", 1) and not OPTS.get("inloop"):
        kgen_mfma_stage(a, part=0)
        a("s_barrier")
        t = Rec()
        kgen_mfma_stage(t, part=1)
        x_loads(t, OPTS.get("x1", XPRE), OPTS.get("x2", XPRE))
        wdt_store(t)
        gemm1_addr(t)
        d = Rec()
        for u in range(5, 8): dma_A(d, u)
        dma_B(d, 0)
        play(a, weave(t.atoms, (d.atoms, 1, len(t.atoms))))
        if OPTS.get("pre"): stamp(a, 28)
        a.drain_lg()
        a.wait_vm("A4")
        a("s_barrier")
        if OPTS.get("pre"): stamp(a, 29)
        dma_B(a, 1)
    else:
        kgen_mfma_stage(a)
        if OPTS.get("pre"): stamp(a, 28)
        x_loads(a, OPTS.get("x1", XPRE), OPTS.get("x2", XPRE))
        wdt_store(a)
        gemm1_addr(a)
        a.drain_lg()
        a.wait_vm("A4")
        a("s_barrier")
        if OPTS.get("pre"): stamp(a, 29)
        if not OPTS.get("inloop"):
            for u in range(5, 8): dma_A(a, u)
            dma_B(a, 0); dma_B(a, 1)
    if OPTS.get("pre"): stamp(a, 30)
    a(f"s_add_u32 s{sP3}, s{sP3}, {WS_F4 - WS_F1}")
    a(f"s_lshl_b32 s{sP2}, s{sRB}, 8")
    a(f"s_lshl_b32 s{sT2}, s{sCS}, 2")
    a(f"s_add_u32 s{sP2}, s{sP2}, s{sT2}")
    a(f"s_add_u32 s{sP2}, s{sP2}, {WS_F5}")
    c1 = -2.0 * math.log2(math.e) * math.sqrt(2.0 / math.pi)
    c2 = c1 * 0.044715
    a(f"s_mov_b32 s{sC2}, {fhex(c2)}")
    a(f"s_mov_b32 s{sC2+1}, {fhex(c2)}")
    a(f"v_mov_b32 v120, {fhex(c1)}")
    a(f"v_mov_b32 v121, {fhex(c1)}")
    gemm1(a)
    if OPTS.get("fine"): cstamp(a, 25)
    stamp(a, 6)
    gemm1_tail(a)
    stamp(a, 7)
    conv(a)
    gemm2(a)
    if OPTS.get("stamps") or not OPTS.get("nofinal"):
        a("s_waitcnt vmcnt(0) lgkmcnt(0)")
    stamp(a, 15); cstamp(a, 17)
    if OPTS.get("stamps"): a("s_waitcnt vmcnt(0)")
    if OPTS.get("spin"):
        a.label("L_spin")
        a("s_memrealtime s[96:97]")
        a("s_waitcnt lgkmcnt(0)")
        a("s_sub_u32 s96, s96, s101")
        a(f"s_cmp_lt_u32 s96, {OPTS['spin']}")
        a("s_cbranch_scc1 L_spin")
    a.label("L_end")
    a("s_endpgm")
    a.L.extend(DEFER)
    hdr = open("parallel_sum__ssm_conv_s4__glu_gated_geglu__prompt.s.ref").read().split("\n")
    head = []
    for line in hdr:
        if line.startswith("; @launch"):
            head.append(f"; @launch grid=(256,1,1) block=(256,1,1) lds={LDS_BYTES}")
        elif line.startswith(";"): head.append(line)
        else: break
    s = "\n".join(head) + "\n"
    s += '.amdgcn_target "amdgcn-amd-amdhsa--gfx950"\n.text\n'
    s += f".globl {KNAME}\n.p2align 8\n.type {KNAME},@function\n{KNAME}:\n"
    lines = a.L
    if OPTS.get("align", 1):
        sys.path.insert(0, "dev")
        import align
        lines = align.fix(lines, verbose=True)
    s += "\n".join(lines) + "\n"
    s += f""".section .rodata,"a"
.p2align 6
.amdhsa_kernel {KNAME}
  .amdhsa_next_free_vgpr 512
  .amdhsa_next_free_sgpr 102
  .amdhsa_accum_offset 256
  .amdhsa_group_segment_fixed_size 0
  .amdhsa_kernarg_size 128
  .amdhsa_user_sgpr_count 2
  .amdhsa_user_sgpr_kernarg_segment_ptr 1
  .amdhsa_system_sgpr_workgroup_id_x 1
.end_amdhsa_kernel
"""
    return s

if __name__ == "__main__":
    opts = dict(vmsp=80, wb=10, wt=14, wt2=18, hpre=8, whend=140, bextra=60, lateadd=1, yfpos=20, yppos=80, codewarm=23,
                exptail=2, tile84=1, lnA=1, dbunch=2, nofinal=1, ppos=60, cpos=75, dpos=50)
    out = "parallel_sum__ssm_conv_s4__glu_gated_geglu__prompt.s"
    for arg in sys.argv[1:]:
        if arg.startswith("-o="): out = arg[3:]
        elif "=" in arg:
            k, v = arg.split("="); opts[k] = int(v)
    open(out, "w").write(build(opts))
    print("wrote", out)
```
